```python
import torch

def _softmax(x, axis=-1):
    return torch.softmax(x, dim=axis)
def _gelu(x):
    return torch.nn.functional.gelu(x, approximate="tanh")
def _silu(x):
    return torch.nn.functional.silu(x)
def _sigmoid(x):
    return torch.sigmoid(x)
def _layernorm(x, axis=-1, eps=1e-5):
    m = x.mean(dim=axis, keepdim=True)
    v = x.var(dim=axis, keepdim=True, unbiased=False)
    return (x - m) / torch.sqrt(v + eps)
def _scatter_add(tgt, idx, src, axis=0):
    return tgt.clone().index_add_(axis, idx, src)
def _segment_sum(src, seg, n):
    out = torch.zeros((n,) + src.shape[1:], dtype=src.dtype)
    return out.index_add_(0, seg, src)
def _pad(x, pw):
    flat = tuple(v for pair in reversed(pw) for v in pair)
    return torch.nn.functional.pad(x, flat)

kernel_name = 'concat_heads__mha_block__compressed_kv_cla__prompt'

def setup_inputs():

    _w = (lambda a: (lambda t: t.to(torch.bfloat16) if t.is_floating_point() else t)(torch.as_tensor(a)))
    def _A_setup():
        B, S, D, H = 1, 2048, 640, 32
        return {
            "x": _w((lambda *s: torch.randn(*s, dtype=torch.bfloat16) * 0.2)(B, S, D)),
            "wqkv": _w((lambda *s: torch.randn(*s, dtype=torch.bfloat16) * 0.2)(D, 3 * D)),
            "wo": _w((lambda *s: torch.randn(*s, dtype=torch.bfloat16) * 0.05)(D, D)),
        }
    _A_in = _A_setup()

    def _B_setup():
        B, H, Sq, Sk, D, M = 1, 32, 2048, 2048, 128, 640
        Dc = 4 * D
        return {
            "x": _w((lambda *s: torch.randn(*s, dtype=torch.bfloat16) * 0.4)(B, Sq, M)),
            "c_kv": _w((lambda *s: torch.randn(*s, dtype=torch.bfloat16) * 0.4)(B, Sk, Dc)),
            "w_q": _w((lambda *s: torch.randn(*s, dtype=torch.bfloat16) * 3.2)(M, H, D) * (M ** -0.5)),
            "w_uk": _w((lambda *s: torch.randn(*s, dtype=torch.bfloat16) * 3.2)(Dc, H, D) * (Dc ** -0.5)),
            "w_uv": _w((lambda *s: torch.randn(*s, dtype=torch.bfloat16) * 0.4)(Dc, H, D) * (Dc ** -0.5)),
            "w_o": _w((lambda *s: torch.randn(*s, dtype=torch.bfloat16) * 0.4)(H, D, M) * ((H * D) ** -0.5)),
        }
    _B_in = _B_setup()

    return {
        "A_x": _A_in["x"],
        "A_wqkv": _A_in["wqkv"],
        "A_wo": _A_in["wo"],
        "B_x": _B_in["x"],
        "B_c_kv": _B_in["c_kv"],
        "B_w_q": _B_in["w_q"],
        "B_w_uk": _B_in["w_uk"],
        "B_w_uv": _B_in["w_uv"],
        "B_w_o": _B_in["w_o"],
    }

def reference(A_x, A_wqkv, A_wo, B_x, B_c_kv, B_w_q, B_w_uk, B_w_uv, B_w_o):
    def _A_ref(x, wqkv, wo):
        B, S, D = x.shape
        H = 32
        Dh = D // H
        qkv = (lambda x, *d: x.permute(*d))((x @ wqkv).reshape(B, S, 3, H, Dh), 2, 0, 3, 1, 4)
        q, k, v = qkv[0], qkv[1], qkv[2]
        scores = torch.einsum("bhqd,bhkd->bhqk", q, k) * (Dh ** -0.5)
        p = _softmax(scores, axis=-1)
        o = torch.einsum("bhqk,bhkd->bhqd", p, v)
        return (lambda x, *d: x.permute(*d))(o, 0, 2, 1, 3).reshape(B, S, D) @ wo

    def _B_ref(x, c_kv, w_q, w_uk, w_uv, w_o):
        B, Sq, M = x.shape[0], x.shape[1], x.shape[2]
        Sk = c_kv.shape[1]
        H, D = w_q.shape[1], w_q.shape[2]
        q = torch.einsum("bqm,mhd->bhqd", x, w_q)
        k = torch.einsum("bkc,chd->bhkd", c_kv, w_uk)
        v = torch.einsum("bkc,chd->bhkd", c_kv, w_uv)
        scores = torch.einsum("bhqd,bhkd->bhqk", q, k) * (D ** -0.5)
        off = Sk - Sq
        qi = torch.arange(Sq)[:, None]
        kj = torch.arange(Sk)[None, :]
        cmask = kj <= (qi + off)
        scores = torch.where(cmask[None, None], scores, -1e9)
        p = _softmax(scores, axis=-1)
        ctx = torch.einsum("bhqk,bhkd->bhqd", p, v)
        return torch.einsum("bhqd,hdm->bqm", ctx, w_o)

    a = _A_ref(A_x, A_wqkv, A_wo)
    b = _B_ref(B_x, B_c_kv, B_w_q, B_w_uk, B_w_uv, B_w_o)
    return torch.concatenate([a, b], axis=-1)
```

```python
from emit import Emitter
from gemm import PTR, WS, MB, make_srd, load_ptrs, f32bits

THR = 16.0

def interleave(e, mf, others):
    n = len(mf)
    k = len(others)
    pos = 0
    for i, m in enumerate(mf):
        e.i(m)
        tgt = (k * (i + 1) + n - 1) // n
        while pos < tgt:
            e.i(others[pos]); pos += 1
    while pos < k:
        e.i(others[pos]); pos += 1

def maxtree(S, out, t):
    L = [f'v_max3_f32 v{out}, v{S}, v{S+1}, v{S+2}', f'v_max3_f32 v{t}, v{S+3}, v{S+4}, v{S+5}']
    for a in range(6, 14, 4):
        L.append(f'v_max3_f32 v{out}, v{out}, v{S+a}, v{S+a+1}')
        L.append(f'v_max3_f32 v{t}, v{t}, v{S+a+2}, v{S+a+3}')
    L.append(f'v_max3_f32 v{out}, v{out}, v{S+14}, v{S+15}')
    L.append(f'v_max_f32 v{out}, v{out}, v{t}')
    return L

def rare_fix(e, S, MN, O, nO, lregs, mx, t0, t1, first):
    e.settle()
    for x in maxtree(S, mx, t0):
        e.i(x)
    e.i(f'v_mov_b32 v{t0}, v{mx}')
    e.i(f'v_mov_b32 v{t1}, v{mx}')
    e.i(f'v_permlane32_swap_b32 v{t0}, v{t1}')
    e.i(f'v_max_f32 v{mx}, v{t0}, v{t1}')
    if not first:
        e.i(f'v_max_f32 v{mx}, 0, v{mx}')
    for r in range(16):
        e.i(f'v_sub_f32 v{S+r}, v{S+r}, v{mx}')
        e.i(f'v_sub_f32 v{MN+r}, v{MN+r}, v{mx}')
    if not first:
        e.i(f'v_sub_f32 v{t0}, 0, v{mx}')
        e.i(f'v_exp_f32 v{t0}, v{t0}')
        for r in range(nO):
            e.i(f'v_mul_f32 v{O+r}, v{O+r}, v{t0}')
        for r in lregs:
            e.i(f'v_mul_f32 v{r}, v{r}, v{t0}')
    e.settle()

def attn_b(e):
    KD, VD = 8, 12
    KR, VR = 16, 24
    Q, O, S0, S1, MN, P, KF, VF = 32, 64, 128, 144, 160, 176, 184, 216
    L = [248, 249, 250, 251]
    MX, T0, T1 = 252, 253, 254
    SS = [S0, S1]
    rare_sites = []
    e.i('s_and_b32 s53, s3, 31')
    e.i('s_lshr_b32 s4, s3, 5')
    make_srd(e, 40, PTR['ws'], WS['KB'], 16 * MB)
    make_srd(e, 44, PTR['ws'], WS['VB'], 16 * MB)
    e.i('v_and_b32 v1, 63, v0')
    e.i('v_lshrrev_b32 v2, 6, v0')
    e.i('v_readfirstlane_b32 s57, v2')
    e.i('v_lshrrev_b32 v2, 4, v1')
    e.i('v_and_b32 v3, 15, v1')
    e.i('s_lshl_b32 s60, s53, 11')
    e.i('s_lshl_b32 s61, s57, 4')
    e.i('s_add_u32 s60, s60, s61')
    e.i('v_add_u32 v4, s60, v2')
    e.i('v_lshlrev_b32 v4, 8, v4')
    for n in range(4):
        e.i(f'v_add_u32 v5, {4*n}, v2')
        e.i('v_xor_b32 v5, v5, v3')
        e.i(f'v_lshl_add_u32 v{KD+n}, v5, 4, v4')
    e.i('v_lshrrev_b32 v4, 3, v1')
    e.i('v_and_b32 v3, 7, v1')
    e.i('s_lshl_b32 s60, s53, 7')
    e.i('s_lshl_b32 s61, s57, 5')
    e.i('s_add_u32 s60, s60, s61')
    e.i('v_add_u32 v4, s60, v4')
    e.i('v_lshlrev_b32 v4, 12, v4')
    for n in range(4):
        e.i(f'v_add_u32 v5, {4*n}, v2')
        e.i('v_and_b32 v5, 7, v5')
        e.i('v_xor_b32 v5, v5, v3')
        e.i('v_lshl_add_u32 v5, v5, 4, v4')
        e.i(f'v_add_u32 v{VD+n}, {n*(8*4096-1024)}, v5')
    e.i('v_and_b32 v2, 31, v1')
    e.i('v_lshrrev_b32 v3, 5, v1')
    e.i('v_and_b32 v4, 15, v1')
    e.i('v_xor_b32 v4, v4, v3')
    e.i('v_lshlrev_b32 v4, 4, v4')
    e.i(f'v_lshl_add_u32 v{KR}, v2, 8, v4')
    for t in range(1, 8):
        e.i(f'v_xor_b32 v{KR+t}, {32*t}, v{KR}')
    e.i('v_bfe_u32 v4, v1, 1, 3')
    e.i('v_xor_b32 v4, v4, v3')
    e.i('v_lshlrev_b32 v4, 4, v4')
    e.i(f'v_lshl_add_u32 v{VR}, v2, 7, v4')
    e.i(f'v_add_u32 v{VR}, 16384, v{VR}')
    for c in range(1, 4):
        e.i(f'v_xor_b32 v{VR+c}, {32*c}, v{VR}')
    e.i('s_lshl_b32 s62, s57, 12')
    e.i('s_mov_b32 s67, 0')
    e.i('s_sub_u32 s52, 15, s4')
    qloop = e.newlabel('bq')
    e.label(qloop)

    def dmaK(buf):
        e.i(f's_add_u32 m0, s62, {buf*32768}')
        for n in range(4):
            e.i(f'buffer_load_dwordx4 v{KD+n}, s[40:43], s54 offen offset:{1024*n} lds')
        e.i('s_add_u32 s54, s54, 16384')
    def dmaV(buf):
        e.i(f's_add_u32 m0, s62, {buf*32768+16384}')
        for n in range(4):
            e.i(f'buffer_load_dwordx4 v{VD+n}, s[44:47], s55 offen offset:{1024*n} lds')
        e.i('s_add_u32 s55, s55, 128')
    def rdK(buf, j):
        return [f'ds_read_b128 v[{KF+4*t}:{KF+4*t+3}], v{KR+t} offset:{buf*32768+j*8192}' for t in range(8)]
    def rdV(buf, j):
        r = []
        for t in range(2):
            for blk in range(4):
                f = VF + 4 * (t * 4 + blk)
                r.append(f'ds_read_b128 v[{f}:{f+3}], v{VR+2*j+t} offset:{buf*32768+blk*4096}')
        return r
    def qk(S):
        r = []
        for t in range(8):
            c = f'v[{MN}:{MN+15}]' if t == 0 else f'v[{S}:{S+15}]'
            r.append(f'v_mfma_f32_32x32x16_bf16 v[{S}:{S+15}], v[{KF+4*t}:{KF+4*t+3}], v[{Q+4*t}:{Q+4*t+3}], {c}')
        return r
    def pv():
        r = []
        for t in range(2):
            for blk in range(4):
                f = VF + 4 * (t * 4 + blk)
                r.append(f'v_mfma_f32_32x32x16_bf16 v[{O+16*blk}:{O+16*blk+15}], v[{f}:{f+3}], v[{P+4*t}:{P+4*t+3}], v[{O+16*blk}:{O+16*blk+15}]')
        return r
    def softmax(S):
        r = []
        for p in range(8):
            a, b = S + 2 * p, S + 2 * p + 1
            r.append(f'v_exp_f32 v{a}, v{a}')
            r.append(f'v_exp_f32 v{b}, v{b}')
            if p >= 1:
                a2, b2 = S + 2 * (p - 1), S + 2 * (p - 1) + 1
                r.append(f'v_add_f32 v{L[(2*p-2)%4]}, v{L[(2*p-2)%4]}, v{a2}')
                r.append(f'v_add_f32 v{L[(2*p-1)%4]}, v{L[(2*p-1)%4]}, v{b2}')
                r.append(f'v_cvt_pk_bf16_f32 v{P+p-1}, v{a2}, v{b2}')
        r.append(f'v_add_f32 v{L[2]}, v{L[2]}, v{S+14}')
        r.append(f'v_add_f32 v{L[3]}, v{L[3]}, v{S+15}')
        r.append(f'v_cvt_pk_bf16_f32 v{P+7}, v{S+14}, v{S+15}')
        return r
    def check(S):
        lr, lb = e.newlabel('brare'), e.newlabel('bback')
        e.i(f'v_cmp_lt_f32 vcc, {THR}, v{MX}')
        e.i(f's_cbranch_vccnz {lr}')
        e.raw(f'{lb}:')
        rare_sites.append((lr, lb, S))

    e.i('s_barrier')
    e.i('s_mov_b32 s54, 0')
    e.i('s_mov_b32 s55, 0')
    dmaK(0); dmaV(0); dmaK(1)
    make_srd(e, 48, PTR['ws'], WS['QB'], 16 * MB)
    e.i('v_and_b32 v2, 31, v1')
    e.i('s_lshl_b32 s60, s53, 11')
    e.i('s_lshl_b32 s61, s52, 7')
    e.i('s_add_u32 s60, s60, s61')
    e.i('s_lshl_b32 s61, s57, 5')
    e.i('s_add_u32 s60, s60, s61')
    e.i('v_add_u32 v2, s60, v2')
    e.i('v_lshlrev_b32 v2, 8, v2')
    e.i('v_lshrrev_b32 v3, 5, v1')
    e.i('v_lshl_add_u32 v2, v3, 4, v2')
    for t in range(8):
        e.i(f'buffer_load_dwordx4 v[{Q+4*t}:{Q+4*t+3}], v2, s[48:51], 0 offen offset:{32*t}')
    for r in range(64):
        e.i(f'v_mov_b32 v{O+r}, 0')
    for r in range(16):
        e.i(f'v_mov_b32 v{MN+r}, 0')
    for r in L:
        e.i(f'v_mov_b32 v{r}, 0')
    e.i('s_waitcnt vmcnt(0)')
    e.i('s_barrier')
    e.i('s_mov_b32 s70, 1')
    for x in rdK(0, 0):
        e.i(x)
    for x in qk(S0):
        e.i(x)
    ldiag = e.newlabel('bdiag')
    e.i('s_cmp_eq_u32 s52, 0')
    e.settle()
    e.i(f's_cbranch_scc1 {ldiag}')
    rare_fix(e, S0, MN, O, 64, L, MX, T0, T1, True)
    e.i('s_mov_b32 s70, 0')
    e.i(f'v_mov_b32 v{MX}, 0')
    for x in rdK(0, 1):
        e.i(x)
    e.i('s_waitcnt lgkmcnt(0)')
    e.i('s_barrier')
    dmaK(0)
    dmaV(1)
    e.i('s_mov_b32 s56, s52')
    loop = e.newlabel('bl')
    e.label(loop)
    for tp in range(2):
        buf, nb = tp, 1 - tp
        for j in range(2):
            cur, nxt = SS[j], SS[1 - j]
            check(cur)
            interleave(e, qk(nxt), rdV(buf, j) + softmax(cur))
            kreads = rdK(nb, 0) if j == 0 else rdK(nb, 1)
            interleave(e, pv(), kreads[:3] + maxtree(nxt, MX, T0) + kreads[3:])
        e.i('s_waitcnt vmcnt(0)')
        e.settle()
        e.i('s_barrier')
        if tp == 1:
            lsk = e.newlabel('bsk')
            e.i('s_cmp_eq_u32 s56, 1')
            e.i(f's_cbranch_scc1 {lsk}')
            dmaK(nb)
            e.label(lsk)
        else:
            dmaK(nb)
        dmaV(buf)
    e.i('s_sub_u32 s56, s56, 1')
    e.i('s_cmp_lg_u32 s56, 0')
    e.settle()
    e.i(f's_cbranch_scc1 {loop}')
    e.label(ldiag)
    lend = e.newlabel('bdend')
    for j4 in range(4):
        buf, j = j4 >> 1, j4 & 1
        if j4 == 0:
            lskip = e.newlabel('bsk')
            e.i('s_cmp_lg_u32 s52, 0')
            e.i(f's_cbranch_scc1 {lskip}')
            dmaV(1)
            e.label(lskip)
        if j4 == 2:
            e.i('s_waitcnt vmcnt(0)')
            e.settle()
            e.i('s_barrier')
        lnext = e.newlabel('bdn')
        e.i(f's_cmp_lt_u32 s57, {j4}')
        e.settle()
        e.i(f's_cbranch_scc1 {lnext}')
        for x in rdK(buf, j):
            e.i(x)
        for x in qk(S0):
            e.i(x)
        for x in rdV(buf, j):
            e.i(x)
        lnm = e.newlabel('bnm')
        e.i(f's_cmp_lg_u32 s57, {j4}')
        e.settle()
        e.i(f's_cbranch_scc1 {lnm}')
        e.i('v_and_b32 v2, 31, v1')
        e.i('v_lshrrev_b32 v3, 5, v1')
        e.i('v_lshlrev_b32 v3, 2, v3')
        e.i('v_sub_u32 v2, v2, v3')
        e.i('v_mov_b32 v4, 0xff800000')
        for r in range(16):
            kk = 8 * (r >> 2) + (r & 3)
            e.i(f'v_cmp_gt_i32 vcc, {kk}, v2')
            e.i(f'v_cndmask_b32 v{S0+r}, v{S0+r}, v4, vcc')
        e.label(lnm)
        lfirst, lcont = e.newlabel('bf'), e.newlabel('bc')
        e.i('s_cmp_eq_u32 s70, 1')
        e.i(f's_cbranch_scc1 {lfirst}')
        for x in maxtree(S0, MX, T0):
            e.i(x)
        check(S0)
        e.i(f's_branch {lcont}')
        e.label(lfirst)
        rare_fix(e, S0, MN, O, 64, L, MX, T0, T1, True)
        e.i('s_mov_b32 s70, 0')
        e.label(lcont)
        for x in softmax(S0):
            e.i(x)
        for x in pv():
            e.i(x)
        e.label(lnext)
    e.settle()
    e.i(f'v_add_f32 v{L[0]}, v{L[0]}, v{L[1]}')
    e.i(f'v_add_f32 v{L[2]}, v{L[2]}, v{L[3]}')
    e.i(f'v_add_f32 v{L[0]}, v{L[0]}, v{L[2]}')
    e.i(f'v_mov_b32 v{T0}, v{L[0]}')
    e.i(f'v_mov_b32 v{T1}, v{L[0]}')
    e.i(f'v_permlane32_swap_b32 v{T0}, v{T1}')
    e.i(f'v_add_f32 v{T0}, v{T0}, v{T1}')
    e.i(f'v_rcp_f32 v{T0}, v{T0}')
    make_srd(e, 48, PTR['ws'], WS['CTX'], 16 * MB)
    e.i('v_and_b32 v2, 31, v1')
    e.i('s_lshl_b32 s60, s52, 7')
    e.i('s_lshl_b32 s61, s57, 5')
    e.i('s_add_u32 s60, s60, s61')
    e.i('v_add_u32 v2, s60, v2')
    e.i('v_lshlrev_b32 v2, 13, v2')
    e.i('v_lshrrev_b32 v3, 5, v1')
    e.i('v_lshl_add_u32 v2, v3, 3, v2')
    e.i('s_lshl_b32 s60, s53, 8')
    for blk in range(4):
        for g in range(4):
            a = O + 16 * blk + 4 * g
            t = 128 + 8 * ((blk * 4 + g) % 4)
            for i in range(4):
                e.i(f'v_mul_f32 v{t+2+i}, v{a+i}, v{T0}')
            e.i(f'v_cvt_pk_bf16_f32 v{t}, v{t+2}, v{t+3}')
            e.i(f'v_cvt_pk_bf16_f32 v{t+1}, v{t+4}, v{t+5}')
            e.i(f'buffer_store_dwordx2 v[{t}:{t+1}], v2, s[48:51], s60 offen offset:{blk*64+16*g}')
    e.i('s_add_u32 s67, s67, 1')
    e.i('s_mov_b32 s52, s4')
    e.i('s_cmp_eq_u32 s67, 1')
    e.settle()
    e.i(f's_cbranch_scc1 {qloop}')
    e.i('s_endpgm')
    for lr, lb, S in rare_sites:
        e.label(lr)
        e._nop(16)
        rare_fix(e, S, MN, O, 64, L, MX, T0, T1, False)
        e.i(f's_branch {lb}')

def attn_a(e):
    KD, VD = 8, 12
    KR, VR = 16, 18
    Q, O, MN, SB, P, KF, VF = 32, 64, 96, 128, 192, 208, 224
    MX = [240, 241]
    T0, T1 = 242, 243
    rare_sites = []
    def Sreg(par, qt):
        return SB + 32 * par + 16 * qt
    e.i('s_and_b32 s53, s3, 31')
    e.i('s_lshr_b32 s52, s3, 5')
    make_srd(e, 40, PTR['ws'], WS['KA'], 4 * MB)
    make_srd(e, 44, PTR['ws'], WS['VA'], 4 * MB)
    e.i('v_and_b32 v1, 63, v0')
    e.i('v_lshrrev_b32 v2, 6, v0')
    e.i('v_readfirstlane_b32 s57, v2')
    e.i('v_lshrrev_b32 v2, 2, v1')
    e.i('v_bfe_u32 v3, v1, 4, 2')
    e.i('v_and_b32 v4, 3, v1')
    e.i('v_xor_b32 v4, v4, v3')
    e.i('s_lshl_b32 s60, s53, 11')
    e.i('s_lshl_b32 s61, s57, 5')
    e.i('s_add_u32 s60, s60, s61')
    e.i('v_add_u32 v2, s60, v2')
    e.i('v_lshlrev_b32 v2, 6, v2')
    e.i(f'v_lshl_add_u32 v{KD}, v4, 4, v2')
    e.i('v_lshrrev_b32 v2, 4, v1')
    e.i('v_and_b32 v3, 15, v1')
    e.i('s_lshl_b32 s61, s57, 3')
    e.i('s_lshl_b32 s60, s53, 5')
    e.i('s_add_u32 s60, s60, s61')
    for n in range(2):
        e.i(f'v_add_u32 v4, {4*n}, v2')
        e.i('v_add_u32 v5, s61, v4')
        e.i('v_and_b32 v5, 15, v5')
        e.i('v_xor_b32 v5, v5, v3')
        e.i('v_add_u32 v4, s60, v4')
        e.i('v_lshlrev_b32 v4, 12, v4')
        e.i('v_lshl_add_u32 v4, v5, 4, v4')
        e.i(f'v_subrev_u32 v{VD+n}, {1024*n}, v4')
    e.i('v_and_b32 v2, 31, v1')
    e.i('v_lshrrev_b32 v3, 5, v1')
    e.i('v_bfe_u32 v4, v1, 2, 2')
    e.i('v_xor_b32 v4, v4, v3')
    e.i('v_lshlrev_b32 v4, 4, v4')
    e.i(f'v_lshl_add_u32 v{KR}, v2, 6, v4')
    e.i(f'v_xor_b32 v{KR+1}, 32, v{KR}')
    e.i('v_and_b32 v4, 15, v1')
    e.i('v_xor_b32 v4, v4, v3')
    e.i('v_lshlrev_b32 v4, 4, v4')
    e.i(f'v_lshl_add_u32 v{VR}, v2, 8, v4')
    e.i(f'v_add_u32 v{VR}, 8192, v{VR}')
    for c in range(1, 8):
        e.i(f'v_xor_b32 v{VR+c}, {32*c}, v{VR}')
    e.i('s_lshl_b32 s62, s57, 11')

    def dmaK(buf):
        e.i(f's_add_u32 m0, s62, {buf*16384}')
        for n in range(2):
            e.i(f'buffer_load_dwordx4 v{KD}, s[40:43], s54 offen offset:{1024*n} lds')
        e.i('s_add_u32 s54, s54, 8192')
    def dmaV(buf):
        e.i(f's_add_u32 m0, s62, {buf*16384+8192}')
        for n in range(2):
            e.i(f'buffer_load_dwordx4 v{VD+n}, s[44:47], s55 offen offset:{1024*n} lds')
        e.i('s_add_u32 s55, s55, 256')
    def rdK(buf, j, par):
        return [f'ds_read_b128 v[{KF+8*par+4*t}:{KF+8*par+4*t+3}], v{KR+t} offset:{buf*16384+j*2048}' for t in range(2)]
    def rdV(buf, j, par):
        return [f'ds_read_b128 v[{VF+8*par+4*t}:{VF+8*par+4*t+3}], v{VR+2*j+t} offset:{buf*16384}' for t in range(2)]
    def qk(par):
        r = []
        for qt in range(2):
            S = Sreg(par, qt)
            for t in range(2):
                c = f'v[{MN+16*qt}:{MN+16*qt+15}]' if t == 0 else f'v[{S}:{S+15}]'
                f = KF + 8 * par + 4 * t
                r.append(f'v_mfma_f32_32x32x16_bf16 v[{S}:{S+15}], v[{f}:{f+3}], v[{Q+8*qt+4*t}:{Q+8*qt+4*t+3}], {c}')
        return r
    def pv(par):
        r = []
        for qt in range(2):
            for t in range(2):
                f = VF + 8 * par + 4 * t
                r.append(f'v_mfma_f32_32x32x16_bf16 v[{O+16*qt}:{O+16*qt+15}], v[{f}:{f+3}], v[{P+8*qt+4*t}:{P+8*qt+4*t+3}], v[{O+16*qt}:{O+16*qt+15}]')
        return r
    def softmax(par):
        r = []
        for qt in range(2):
            S = Sreg(par, qt)
            for p in range(8):
                a, b = S + 2 * p, S + 2 * p + 1
                r.append(f'v_exp_f32 v{a}, v{a}')
                r.append(f'v_exp_f32 v{b}, v{b}')
                if p >= 1:
                    r.append(f'v_cvt_pk_bf16_f32 v{P+8*qt+p-1}, v{a-2}, v{b-2}')
            r.append(f'v_cvt_pk_bf16_f32 v{P+8*qt+7}, v{S+14}, v{S+15}')
        return r
    def check(par):
        lr, lb = e.newlabel('arare'), e.newlabel('aback')
        e.i(f'v_max_f32 v{T1}, v{MX[0]}, v{MX[1]}')
        e.i(f'v_cmp_lt_f32 vcc, {THR}, v{T1}')
        e.i(f's_cbranch_vccnz {lr}')
        e.raw(f'{lb}:')
        rare_sites.append((lr, lb, par))

    e.i('s_mov_b32 s54, 0')
    e.i('s_mov_b32 s55, 0')
    dmaK(0); dmaV(0); dmaK(1)
    make_srd(e, 48, PTR['ws'], WS['QA'], 4 * MB)
    e.i('v_and_b32 v2, 31, v1')
    e.i('s_lshl_b32 s60, s53, 11')
    e.i('s_lshl_b32 s61, s52, 8')
    e.i('s_add_u32 s60, s60, s61')
    e.i('s_lshl_b32 s61, s57, 6')
    e.i('s_add_u32 s60, s60, s61')
    e.i('v_add_u32 v2, s60, v2')
    e.i('v_lshlrev_b32 v2, 6, v2')
    e.i('v_lshrrev_b32 v3, 5, v1')
    e.i('v_lshl_add_u32 v2, v3, 4, v2')
    for qt in range(2):
        for t in range(2):
            e.i(f'buffer_load_dwordx4 v[{Q+8*qt+4*t}:{Q+8*qt+4*t+3}], v2, s[48:51], 0 offen offset:{qt*2048+32*t}')
    for r in range(32):
        e.i(f'v_mov_b32 v{O+r}, 0')
        e.i(f'v_mov_b32 v{MN+r}, 0')
    e.i('s_waitcnt vmcnt(0)')
    e.i('s_barrier')
    for x in rdK(0, 0, 0):
        e.i(x)
    for x in qk(0):
        e.i(x)
    for qt in range(2):
        rare_fix(e, Sreg(0, qt), MN + 16 * qt, O + 16 * qt, 16, [], MX[qt], T0, T1, True)
        e.i(f'v_mov_b32 v{MX[qt]}, 0')
    for x in rdK(0, 1, 1):
        e.i(x)
    dmaV(1)
    e.i('s_mov_b32 s56, 8')
    loop = e.newlabel('al')
    e.label(loop)
    for tp in range(2):
        buf, nb = tp, 1 - tp
        for j in range(4):
            par = j & 1
            check(par)
            interleave(e, qk(1 - par), rdV(buf, j, par) + softmax(par))
            kre = rdK(buf, j + 2, par) if j < 2 else rdK(nb, j - 2, par)
            mt = maxtree(Sreg(1 - par, 0), MX[0], T0) + maxtree(Sreg(1 - par, 1), MX[1], T1)
            interleave(e, pv(par), kre + mt)
            if j == 1:
                e.i('s_waitcnt vmcnt(0)')
                e.settle()
                e.i('s_barrier')
                dmaK(buf)
        e.settle()
        e.i('s_barrier')
        dmaV(buf)
    e.i('s_sub_u32 s56, s56, 1')
    e.i('s_cmp_lg_u32 s56, 0')
    e.settle()
    e.i(f's_cbranch_scc1 {loop}')
    e.settle()
    make_srd(e, 48, PTR['ws'], WS['OA'], 2048 * 640 * 2)
    e.i('v_and_b32 v2, 31, v1')
    e.i('s_lshl_b32 s60, s52, 8')
    e.i('s_lshl_b32 s61, s57, 6')
    e.i('s_add_u32 s60, s60, s61')
    e.i('v_add_u32 v2, s60, v2')
    e.i('v_mul_u32_u24 v2, 1280, v2')
    e.i('v_lshrrev_b32 v3, 5, v1')
    e.i('v_lshl_add_u32 v2, v3, 3, v2')
    e.i('s_mul_i32 s60, s53, 40')
    for qt in range(2):
        Oq = O + 16 * qt
        e.i(f'v_mov_b32 v{T0}, v{Oq+8}')
        e.i(f'v_mov_b32 v{T1}, v{Oq+8}')
        e.i(f'v_permlane32_swap_b32 v{T0}, v{T1}')
        e.i(f'v_rcp_f32 v{T1}, v{T1}')
        if qt == 1:
            e.i(f'v_add_u32 v2, {32*1280}, v2')
        for g in range(3):
            t = 128 + 8 * g
            for i in range(4):
                e.i(f'v_mul_f32 v{t+2+i}, v{Oq+4*g+i}, v{T1}')
            e.i(f'v_cvt_pk_bf16_f32 v{t}, v{t+2}, v{t+3}')
            e.i(f'v_cvt_pk_bf16_f32 v{t+1}, v{t+4}, v{t+5}')
            if g == 2:
                e.i('v_cmp_gt_u32 vcc, 32, v1')
                e.i('s_and_saveexec_b64 s[68:69], vcc')
            e.i(f'buffer_store_dwordx2 v[{t}:{t+1}], v2, s[48:51], s60 offen offset:{16*g}')
            if g == 2:
                e.i('s_mov_b64 exec, s[68:69]')
    e.i('s_endpgm')
    for lr, lb, par in rare_sites:
        e.label(lr)
        e._nop(16)
        for qt in range(2):
            rare_fix(e, Sreg(par, qt), MN + 16 * qt, O + 16 * qt, 16, [], MX[qt], T0, T1, False)
        e.i(f's_branch {lb}')

def attn_kernel(e, name):
    e.raw(f'.globl {name}')
    e.raw('.p2align 8')
    e.raw(f'.type {name},@function')
    e.raw(f'{name}:')
    endl = e.newlabel('aend')
    la = e.newlabel('aja')
    e.i('s_cmp_ge_u32 s2, 512')
    e.i(f's_cbranch_scc1 {endl}')
    load_ptrs(e)
    e.i('s_cmp_ge_u32 s2, 256')
    e.i(f's_cbranch_scc1 {la}')
    e.i('s_mov_b32 s3, s2')
    attn_b(e)
    e.label(endl)
    e.i('s_endpgm')
    e.label(la)
    e.i('s_sub_u32 s3, s2, 256')
    attn_a(e)
```

```python
import re

TRANS = ('v_exp_f32', 'v_rcp_f32', 'v_log_f32', 'v_rsq_f32', 'v_sqrt_f32')

def regs_of(tok):
    tok = tok.strip()
    tok = tok.lstrip('-')
    m = re.fullmatch(r'abs\((.*)\)', tok)
    if m:
        tok = m.group(1)
    m = re.fullmatch(r'([vsa])\[(\d+):(\d+)\]', tok)
    if m:
        return [f'{m.group(1)}{i}' for i in range(int(m.group(2)), int(m.group(3)) + 1)]
    m = re.fullmatch(r'([vsa])(\d+)', tok)
    if m:
        return [tok]
    if tok in ('vcc', 'exec', 'm0', 'scc'):
        return [tok]
    return []

class Emitter:
    def __init__(self):
        self.lines = []
        self.slot = 0
        self.w = {}
        self.cread = {}
        self.stdata = {}
        self.lgkm = []
        self.nlabel = 0

    def raw(self, s):
        self.lines.append(s)

    def comment(self, s):
        self.lines.append('    ; ' + s)

    def _nop(self, n):
        while n > 0:
            k = min(n, 16)
            self.lines.append(f'    s_nop {k-1}')
            self.slot += k
            n -= k

    def label(self, name):
        self.settle()
        self.lines.append(f'{name}:')

    def newlabel(self, p='L'):
        self.nlabel += 1
        return f'{p}_{self.nlabel}'

    def settle(self):
        need = 0
        for r, (sl, kind, tag) in self.w.items():
            el = self.slot - sl - 1
            req = {'mfma': 12, 'valu': 2, 'trans': 2}.get(kind, 0)
            if r[0] == 's' or r == 'vcc':
                req = 5 if kind in ('valu', 'trans') else 0
            need = max(need, req - el)
        for r, sl in self.cread.items():
            need = max(need, 7 - (self.slot - sl - 1))
        for r, sl in self.stdata.items():
            need = max(need, 2 - (self.slot - sl - 1))
        if self.lgkm:
            self.lines.append('    s_waitcnt lgkmcnt(0)')
            self.slot += 1
            self.lgkm = []
            need -= 1
        self._nop(need)
        self.w = {}
        self.cread = {}
        self.stdata = {}

    def wait_lgkm_for(self, regs):
        regs = set(regs)
        idx = -1
        for i, d in enumerate(self.lgkm):
            if d & regs:
                idx = i
        if idx >= 0:
            n = len(self.lgkm) - 1 - idx
            self.lines.append(f'    s_waitcnt lgkmcnt({n})')
            self.slot += 1
            self.lgkm = self.lgkm[idx + 1:]

    def i(self, text):
        text = text.strip()
        mn, _, rest = text.partition(' ')
        ops = [o.strip() for o in rest.split(',')] if rest else []
        mods = ''
        if ops:
            last = ops[-1].split()
            if len(last) > 1:
                ops[-1] = last[0]
                mods = ' '.join(last[1:])
        kind = 'salu'
        wr, rd, cr = [], [], []
        tag = None
        if mn.startswith('v_mfma'):
            kind = 'mfma'
            wr = regs_of(ops[0]); rd = regs_of(ops[1]) + regs_of(ops[2]); cr = regs_of(ops[3])
            tag = ops[0]
        elif mn.startswith('v_permlane'):
            kind = 'valu'
            wr = regs_of(ops[0]) + regs_of(ops[1]); rd = wr[:]
        elif mn.startswith('v_'):
            kind = 'trans' if mn.split('_e')[0] in TRANS or mn in TRANS else 'valu'
            wr = regs_of(ops[0])
            for o in ops[1:]:
                rd += regs_of(o)
            if mn.startswith('v_fmac') or mn.startswith('v_pk_fmac'):
                rd += wr
            if mn.startswith('v_cndmask') and len(ops) == 3:
                rd += ['vcc']
            if mn.startswith('v_add_co') or mn.startswith('v_addc_co'):
                wr += regs_of(ops[1])
        elif mn.startswith('ds_read'):
            kind = 'ds'
            wr = regs_of(ops[0]); rd = regs_of(ops[1])
        elif mn.startswith('ds_write'):
            kind = 'ds'
            for o in ops:
                rd += regs_of(o)
        elif mn.startswith('ds_bpermute'):
            kind = 'ds'
            wr = regs_of(ops[0]); rd = regs_of(ops[1]) + regs_of(ops[2])
        elif mn.startswith('buffer_load') or mn.startswith('global_load'):
            kind = 'vmem'
            if 'lds' in mods.split():
                for o in ops:
                    rd += regs_of(o)
                rd += ['m0']
            else:
                wr = regs_of(ops[0])
                for o in ops[1:]:
                    rd += regs_of(o)
        elif mn.startswith('buffer_store') or mn.startswith('global_store'):
            kind = 'vmem'
            for o in ops:
                rd += regs_of(o)
        elif mn.startswith('s_'):
            kind = 'salu'
            if mn.startswith(('s_cmp', 's_waitcnt', 's_barrier', 's_nop', 's_cbranch', 's_branch', 's_endpgm', 's_setprio', 's_bitcmp')):
                for o in ops:
                    rd += regs_of(o)
            else:
                wr = regs_of(ops[0]) if ops else []
                for o in ops[1:]:
                    rd += regs_of(o)
        self.wait_lgkm_for(rd + cr + wr)
        need = 0
        def el(sl):
            return self.slot - sl - 1
        for r in rd:
            if r in self.w:
                sl, k, tg = self.w[r]
                req = 0
                if r[0] in 'va' and r != 'vcc':
                    if k == 'mfma':
                        req = 12
                    elif k in ('valu', 'trans'):
                        if kind == 'mfma':
                            req = 2
                        elif mn.startswith('v_permlane'):
                            req = 2
                        elif mn.startswith(('v_readfirstlane', 'v_readlane')):
                            req = 1
                        elif k == 'trans' and kind in ('valu', 'trans'):
                            req = 1
                        if 'dpp' in mods or 'row_' in mods or 'quad_perm' in mods:
                            req = max(req, 2)
                else:
                    if k in ('valu', 'trans'):
                        if kind in ('valu', 'trans'):
                            req = 2
                        elif kind == 'vmem':
                            req = 5
                    elif k == 'salu' and r == 'm0' and kind == 'vmem':
                        req = 1
                need = max(need, req - el(sl))
        for r in cr:
            if r in self.w:
                sl, k, tg = self.w[r]
                req = 0
                if k == 'mfma':
                    req = 0 if tg == ops[3] else 10
                elif k in ('valu', 'trans'):
                    req = 2
                need = max(need, req - el(sl))
        for r in wr:
            if r in self.w:
                sl, k, tg = self.w[r]
                if k == 'mfma' and kind != 'mfma':
                    need = max(need, 12 - el(sl))
                if k == 'mfma' and kind == 'mfma' and tg != ops[0]:
                    need = max(need, 10 - el(sl))
            if r in self.cread and kind in ('valu', 'trans', 'ds', 'vmem'):
                need = max(need, 7 - el(self.cread[r]))
            if r in self.stdata:
                need = max(need, 2 - el(self.stdata[r]))
        self._nop(need)
        self.lines.append('    ' + text)
        for r in wr:
            self.w[r] = (self.slot, kind, tag)
        for r in cr:
            self.cread[r] = self.slot
        if kind == 'vmem' and 'store' in mn and ('x4' in mn or 'x3' in mn):
            for r in regs_of(ops[0] if mn.startswith('buffer') else ops[1]):
                self.stdata[r] = self.slot
        if kind == 'ds':
            self.lgkm.append(set(wr))
            if len(self.lgkm) > 15:
                raise RuntimeError('too many LDS ops outstanding')
        if mn == 's_waitcnt' and 'lgkmcnt(0)' in text:
            self.lgkm = []
        self.slot += 1

    def text(self):
        return '\n'.join(self.lines) + '\n'
```

```python
from emit import Emitter
import math

MB = 1 << 20
WS = dict(QA=0, KA=4*MB, VA=8*MB, QB=12*MB, KB=28*MB, VB=44*MB, OA=60*MB, CTX=64*MB)
LOG2E = 1.4426950408889634
SC_A = (20 ** -0.5) * LOG2E
SC_B = (128 ** -0.5) * LOG2E
import struct
def f32bits(x):
    return struct.unpack('<I', struct.pack('<f', x))[0]

PTR = dict(A_x=16, A_wqkv=18, A_wo=20, B_x=22, B_c=24, B_wq=26, B_wuk=28, B_wuv=30, B_wo=32, out=34, dbg=36, ws=38)

def load_ptrs(e):
    e.i('s_load_dwordx16 s[16:31], s[0:1], 0')
    e.i('s_load_dwordx8 s[32:39], s[0:1], 64')
    e.i('s_waitcnt lgkmcnt(0)')

def make_srd(e, d, ptr, off, nbytes):
    if off:
        e.i(f's_add_u32 s{d}, s{ptr}, {off}')
        e.i(f's_addc_u32 s{d+1}, s{ptr+1}, 0')
    else:
        e.i(f's_mov_b32 s{d}, s{ptr}')
        e.i(f's_mov_b32 s{d+1}, s{ptr+1}')
    e.i(f's_and_b32 s{d+1}, s{d+1}, 0xffff')
    e.i(f's_mov_b32 s{d+2}, {nbytes}')
    e.i(f's_mov_b32 s{d+3}, 0x00020000')

class GemmCfg:
    def __init__(s, BM, BN, TM, TN):
        s.BM, s.BN, s.TM, s.TN = BM, BN, TM, TN
        s.RB = BN * 2
        s.SA = BM * 64
        s.SB = 32 * s.RB
        s.nA = s.SA // 1024 // 4
        s.nB = s.SB // 1024 // 4
        s.lds = 3 * (s.SA + s.SB)
        s.ACC = 64
        s.AF = s.ACC + 16 * TM * TN
        s.BF = s.AF + 2 * TM * 4
        s.nv = s.BF + 2 * TN * 4

def gemm_job(e, c, job):
    TM, TN = c.TM, c.TN
    lda2, ldb2 = job['lda'] * 2, job['ldb'] * 2
    nst = job['K'] // 32
    make_srd(e, 40, *job['X'])
    make_srd(e, 44, *job['W'])
    e.i('v_and_b32 v1, 63, v0')
    e.i('v_lshrrev_b32 v2, 6, v0')
    e.i('v_readfirstlane_b32 s57, v2')
    e.i('s_lshr_b32 s58, s57, 1')
    e.i('s_and_b32 s59, s57, 1')
    e.i('v_lshrrev_b32 v2, 2, v1')
    e.i('v_bfe_u32 v3, v1, 4, 2')
    e.i('v_and_b32 v4, 3, v1')
    e.i('v_xor_b32 v4, v4, v3')
    e.i(f's_mul_i32 s60, s57, {16*c.nA}')
    e.i('s_add_u32 s60, s60, s52')
    e.i('v_add_u32 v2, s60, v2')
    e.i(f's_mov_b32 s61, {lda2}')
    e.i('v_mul_lo_u32 v2, v2, s61')
    e.i('v_lshl_add_u32 v2, v4, 4, v2')
    for n in range(c.nA):
        e.i(f'v_add_u32 v{8+n}, {n*(16*lda2-1024)}, v2')
    sh = int(math.log2(c.RB // 16))
    rp = 1024 // c.RB
    e.i(f'v_lshrrev_b32 v2, {sh}, v1')
    e.i(f'v_and_b32 v3, {c.RB//16-1}, v1')
    e.i('v_lshrrev_b32 v4, 2, v3')
    if c.RB == 256:
        e.i('v_bfe_u32 v5, v1, 4, 2')
    else:
        e.i('v_bfe_u32 v5, v1, 4, 1')
    e.i('v_xor_b32 v4, v4, v5')
    e.i('v_and_b32 v3, 3, v3')
    e.i('v_lshlrev_b32 v3, 4, v3')
    e.i('v_lshl_add_u32 v3, v4, 6, v3')
    e.i(f's_mul_i32 s60, s57, {rp*c.nB}')
    e.i('v_add_u32 v2, s60, v2')
    e.i(f's_mov_b32 s61, {ldb2}')
    e.i('v_mul_lo_u32 v2, v2, s61')
    e.i('v_add_u32 v2, v2, v3')
    e.i('s_lshl_b32 s60, s53, 1')
    e.i('v_add_u32 v2, s60, v2')
    for n in range(c.nB):
        e.i(f'v_add_u32 v{12+n}, {n*(rp*ldb2-1024)}, v2')
    e.i('v_and_b32 v2, 31, v1')
    e.i('v_lshrrev_b32 v3, 5, v1')
    e.i('v_bfe_u32 v4, v1, 2, 2')
    e.i('v_xor_b32 v4, v4, v3')
    e.i(f's_mul_i32 s60, s58, {TM*32}')
    e.i('v_add_u32 v2, s60, v2')
    e.i('v_lshlrev_b32 v2, 6, v2')
    e.i('v_lshl_add_u32 v16, v4, 4, v2')
    e.i('v_xor_b32 v17, 32, v16')
    e.i('v_bfe_u32 v2, v1, 2, 2')
    e.i('v_lshrrev_b32 v3, 5, v1')
    e.i('v_lshl_add_u32 v3, v3, 3, v2')
    e.i(f'v_mul_u32_u24 v3, {c.RB}, v3')
    if c.RB == 256:
        e.i('v_mov_b32 v4, v2')
    else:
        e.i('v_lshrrev_b32 v4, 1, v2')
    e.i(f's_mul_i32 s60, s59, {TN}')
    e.i('v_xor_b32 v4, s60, v4')
    e.i('v_lshl_add_u32 v3, v4, 6, v3')
    e.i('v_bfe_u32 v4, v1, 4, 1')
    e.i('v_and_b32 v5, 3, v1')
    e.i('v_lshlrev_b32 v5, 3, v5')
    e.i('v_lshl_add_u32 v5, v4, 5, v5')
    e.i('v_add_u32 v3, v3, v5')
    e.i(f'v_add_u32 v18, {3*c.SA}, v3')
    for tn in range(1, TN):
        e.i(f'v_xor_b32 v{18+tn}, {tn<<6}, v18')
    e.i(f's_mul_i32 s62, s57, {c.nA*1024}')
    e.i(f's_mul_i32 s63, s57, {c.nB*1024}')
    e.i(f's_add_u32 s63, s63, {3*c.SA}')
    e.i('s_mov_b32 s54, 0')
    e.i('s_mov_b32 s55, 0')
    for r in range(16 * TM * TN):
        e.i(f'v_mov_b32 v{c.ACC+r}, 0')

    def dma(buf):
        e.i(f's_add_u32 m0, s62, {buf*c.SA}')
        for n in range(c.nA):
            e.i(f'buffer_load_dwordx4 v{8+n}, s[40:43], s54 offen offset:{1024*n} lds')
        e.i(f's_add_u32 m0, s63, {buf*c.SB}')
        for n in range(c.nB):
            e.i(f'buffer_load_dwordx4 v{12+n}, s[44:47], s55 offen offset:{1024*n} lds')
        e.i('s_add_u32 s54, s54, 64')
        e.i(f's_add_u32 s55, s55, {32*ldb2}')

    nd = c.nA + c.nB
    dma(0)
    dma(1)
    e.i(f's_mov_b32 s56, {nst}')
    loop = e.newlabel('gl')
    done = e.newlabel('gd')
    e.label(loop)
    for b in range(3):
        e.i(f's_waitcnt vmcnt({nd})')
        e.i('s_barrier')
        dma((b + 2) % 3)
        def rdA(t, tm):
            f = c.AF + (t * TM + tm) * 4
            e.i(f'ds_read_b128 v[{f}:{f+3}], v{16+t} offset:{b*c.SA + tm*2048}')
        def rdB(t, tn):
            f = c.BF + (t * TN + tn) * 4
            for hh in range(2):
                e.i(f'ds_read_b64_tr_b16 v[{f+2*hh}:{f+2*hh+1}], v{18+tn} offset:{b*c.SB + (16*t+4*hh)*c.RB}')
        def reads(t):
            seq = []
            for x in range(max(TM, TN)):
                if x < TN: seq.append(('B', x))
                if x < TM: seq.append(('A', x))
            return seq
        def do(rd, t):
            (rdA if rd[0] == 'A' else rdB)(t, rd[1])
        for rd in reads(0):
            do(rd, 0)
        r1 = reads(1)
        for t in range(2):
            k = 0
            for tm in range(TM):
                for tn in range(TN):
                    a = c.AF + (t * TM + tm) * 4
                    bb = c.BF + (t * TN + tn) * 4
                    d = c.ACC + 16 * (tm * TN + tn)
                    if job['mode'] == 'ROW':
                        e.i(f'v_mfma_f32_32x32x16_bf16 v[{d}:{d+15}], v[{bb}:{bb+3}], v[{a}:{a+3}], v[{d}:{d+15}]')
                    else:
                        e.i(f'v_mfma_f32_32x32x16_bf16 v[{d}:{d+15}], v[{a}:{a+3}], v[{bb}:{bb+3}], v[{d}:{d+15}]')
                    if t == 0 and r1:
                        do(r1.pop(0), 1)
            while t == 0 and r1:
                do(r1.pop(0), 1)
        e.i('s_sub_u32 s56, s56, 1')
        e.i('s_cmp_eq_u32 s56, 0')
        e.settle()
        e.i(f's_cbranch_scc1 {done}')
    e.i(f's_branch {loop}')
    e.label(done)
    e.i('s_waitcnt vmcnt(0)')
    job['epi'](e, c, job)
    e.i('s_endpgm')

def cvt_store(e, c, acc, scale_s, voff, soff, imm, tmp):
    src = [acc + i for i in range(4)]
    if scale_s is not None:
        for i in range(4):
            e.i(f'v_mul_f32 v{tmp+2+i}, {scale_s}, v{acc+i}')
        src = [tmp + 2 + i for i in range(4)]
    e.i(f'v_cvt_pk_bf16_f32 v{tmp}, v{src[0]}, v{src[1]}')
    e.i(f'v_cvt_pk_bf16_f32 v{tmp+1}, v{src[2]}, v{src[3]}')
    e.i(f'buffer_store_dwordx2 v[{tmp}:{tmp+1}], v{voff}, s[48:51], {soff} offen offset:{imm}')

def epi_row_plain(e, c, job):
    TM, TN = c.TM, c.TN
    pitch = job['pitch']
    make_srd(e, 48, *job['O'])
    job['base'](e)
    e.i('v_and_b32 v2, 31, v1')
    e.i(f's_mul_i32 s60, s58, {TM*32}')
    e.i('s_add_u32 s60, s60, s52')
    e.i('v_add_u32 v2, s60, v2')
    e.i(f's_mov_b32 s61, {pitch}')
    e.i('v_mul_lo_u32 v2, v2, s61')
    e.i('v_lshrrev_b32 v3, 5, v1')
    e.i('v_lshlrev_b32 v3, 3, v3')
    e.i(f's_mul_i32 s60, s59, {TN*64}')
    e.i('s_add_u32 s60, s60, s64')
    e.i('v_add3_u32 v2, v2, v3, s60')
    sc = None
    if job.get('scale'):
        e.i(f's_mov_b32 s65, {f32bits(job["scale"])}')
        sc = 's65'
    k = 0
    for tm in range(TM):
        e.i(f's_mov_b32 s66, {tm*32*pitch}')
        for tn in range(TN):
            for g in range(4):
                acc = c.ACC + 16 * (tm * TN + tn) + 4 * g
                cvt_store(e, c, acc, sc, 2, 's66', tn * 64 + 16 * g, 24 + 8 * (k % 4))
                k += 1

def epi_row_a(e, c, job):
    TM, TN = c.TM, c.TN
    make_srd(e, 48, *job['O'])
    e.i('v_and_b32 v2, 31, v1')
    e.i(f's_mul_i32 s60, s58, {TM*32}')
    e.i('s_add_u32 s60, s60, s52')
    e.i('v_add_u32 v2, s60, v2')
    e.i('v_lshlrev_b32 v2, 6, v2')
    e.i('v_lshrrev_b32 v3, 5, v1')
    e.i('v_lshlrev_b32 v3, 2, v3')
    e.i(f's_mul_i32 s60, s59, {TN*32}')
    e.i('s_add_u32 s60, s60, s53')
    e.i('v_add_u32 v3, s60, v3')
    sc = None
    if job.get('scale'):
        e.i(f's_mov_b32 s65, {f32bits(job["scale"])}')
        sc = 's65'
    e.i('v_mov_b32 v20, 0')
    e.i('v_mov_b32 v21, 0')
    e.i('v_mov_b32 v22, 0')
    e.i('v_mov_b32 v23, 0')
    k = 0
    for tn in range(TN):
        for g in range(4):
            e.i(f'v_add_u32 v4, {tn*32+8*g}, v3')
            e.i('v_mul_u32_u24 v5, 0xcccd, v4')
            e.i('v_lshrrev_b32 v5, 20, v5')
            e.i('v_mul_u32_u24 v6, 20, v5')
            e.i('v_sub_u32 v6, v4, v6')
            e.i('v_lshlrev_b32 v5, 17, v5')
            e.i('v_lshl_add_u32 v5, v6, 1, v5')
            e.i('v_add_u32 v5, v5, v2')
            for tm in range(TM):
                e.i(f's_mov_b32 s66, {tm*32*64}')
                acc = c.ACC + 16 * (tm * TN + tn) + 4 * g
                cvt_store(e, c, acc, sc, 5, 's66', 0, 24 + 8 * (k % 4))
                k += 1
            e.i('v_cmp_eq_u32 vcc, 16, v6')
            e.i('s_and_saveexec_b64 s[68:69], vcc')
            for tm in range(TM):
                e.i(f's_mov_b32 s66, {tm*32*64}')
                e.i('buffer_store_dwordx2 v[20:21], v5, s[48:51], s66 offen offset:8')
                e.i('buffer_store_dwordx4 v[20:23], v5, s[48:51], s66 offen offset:16')
            e.i('s_mov_b64 exec, s[68:69]')

def epi_col(e, c, job):
    TM, TN = c.TM, c.TN
    make_srd(e, 48, *job['O'])
    e.i('v_lshrrev_b32 v3, 5, v1')
    e.i('v_lshlrev_b32 v3, 3, v3')
    e.i(f's_mul_i32 s60, s58, {TM*32}')
    e.i('s_add_u32 s60, s60, s52')
    e.i('v_add_u32 v3, s60, v3')
    e.i('v_lshlrev_b32 v3, 1, v3')
    e.i('v_and_b32 v2, 31, v1')
    e.i(f's_mul_i32 s60, s59, {TN*32}')
    e.i('s_add_u32 s60, s60, s53')
    e.i('v_add_u32 v2, s60, v2')
    e.i('v_mov_b32 v20, 0x3f803f80')
    e.i('v_mov_b32 v21, 0x3f803f80')
    k = 0
    for tn in range(TN):
        e.i(f'v_add_u32 v4, {tn*32 - job.get("noff", 0)}, v2')
        if job.get('apart'):
            e.i('v_mul_u32_u24 v5, 0xcccd, v4')
            e.i('v_lshrrev_b32 v5, 20, v5')
            e.i('v_mul_u32_u24 v6, 20, v5')
            e.i('v_sub_u32 v6, v4, v6')
            e.i('v_lshl_add_u32 v4, v5, 5, v6')
        e.i('v_lshl_add_u32 v5, v4, 12, v3')
        for tm in range(TM):
            for g in range(4):
                acc = c.ACC + 16 * (tm * TN + tn) + 4 * g
                cvt_store(e, c, acc, None, 5, '0', tm * 64 + 32 * (g >> 1) + 8 * (g & 1), 24 + 8 * (k % 4))
                k += 1
        if job.get('apart'):
            e.i('v_cmp_eq_u32 vcc, 0, v6')
            e.i('s_and_saveexec_b64 s[68:69], vcc')
            e.i(f's_mov_b32 s66, {20*4096}')
            for tm in range(TM):
                for g in range(4):
                    e.i(f'buffer_store_dwordx2 v[20:21], v5, s[48:51], s66 offen offset:{tm*64+32*(g>>1)+8*(g&1)}')
            e.i('s_mov_b64 exec, s[68:69]')

def gemm_kernel(e, name, c, jobs):
    e.raw(f'.globl {name}')
    e.raw('.p2align 8')
    e.raw(f'.type {name},@function')
    e.raw(f'{name}:')
    total = sum(j['mt'] * j['nt'] for j in jobs)
    e.i(f's_cmp_ge_u32 s2, {total}')
    endl = e.newlabel('gend')
    e.i(f's_cbranch_scc1 {endl}')
    load_ptrs(e)
    start = 0
    labels = []
    for j in jobs:
        l = e.newlabel('job')
        labels.append(l)
        cnt = j['mt'] * j['nt']
        e.i(f's_cmp_lt_u32 s2, {start+cnt}')
        e.i(f's_cbranch_scc1 {l}')
        j['start'] = start
        start += cnt
    e.label(endl)
    e.i('s_endpgm')
    for j, l in zip(jobs, labels):
        e.label(l)
        e.i(f's_sub_u32 s3, s2, {j["start"]}')
        mt = j['mt']
        lm = int(math.log2(mt))
        assert 1 << lm == mt
        if j.get('xcd'):
            e.i('s_and_b32 s4, s3, 7')
            e.i('s_lshr_b32 s3, s3, 3')
            e.i(f's_and_b32 s5, s3, {mt-1}')
            e.i(f's_lshr_b32 s3, s3, {lm}')
            e.i('s_lshl_b32 s3, s3, 3')
            e.i('s_add_u32 s4, s4, s3')
        else:
            e.i(f's_and_b32 s5, s3, {mt-1}')
            e.i(f's_lshr_b32 s4, s3, {lm}')
        e.i(f's_mul_i32 s52, s5, {c.BM}')
        e.i(f's_mul_i32 s53, s4, {c.BN}')
        if j.get('nbase'):
            e.i(f's_add_u32 s53, s53, {j["nbase"]}')
        gemm_job(e, c, j)
    return total

def proj_jobs():
    S = 2048
    jobs = []
    def base_head(e):
        e.i('s_lshl_b32 s64, s53, 12')
    jobs.append(dict(name='BQ', X=(PTR['B_x'], 0, S*640*2), lda=640, W=(PTR['B_wq'], 0, 640*4096*2), ldb=4096, K=640,
                     mode='ROW', epi=epi_row_plain, pitch=256, base=base_head, O=(PTR['ws'], WS['QB'], 16*MB), scale=SC_B, mt=8, nt=32, xcd=True))
    jobs.append(dict(name='BK', X=(PTR['B_c'], 0, S*512*2), lda=512, W=(PTR['B_wuk'], 0, 512*4096*2), ldb=4096, K=512,
                     mode='ROW', epi=epi_row_plain, pitch=256, base=base_head, O=(PTR['ws'], WS['KB'], 16*MB), mt=8, nt=32, xcd=True))
    jobs.append(dict(name='BV', X=(PTR['B_c'], 0, S*512*2), lda=512, W=(PTR['B_wuv'], 0, 512*4096*2), ldb=4096, K=512,
                     mode='COL', epi=epi_col, O=(PTR['ws'], WS['VB'], 16*MB), mt=8, nt=32, xcd=True))
    jobs.append(dict(name='AQ', X=(PTR['A_x'], 0, S*640*2), lda=640, W=(PTR['A_wqkv'], 0, 640*1920*2), ldb=1920, K=640,
                     mode='ROW', epi=epi_row_a, O=(PTR['ws'], WS['QA'], 8*MB), scale=SC_A, mt=8, nt=5))
    jobs.append(dict(name='AK', X=(PTR['A_x'], 0, S*640*2), lda=640, W=(PTR['A_wqkv'], 0, 640*1920*2), ldb=1920, K=640,
                     mode='ROW', epi=epi_row_a, O=(PTR['ws'], WS['QA'], 8*MB), mt=8, nt=5, nbase=640))
    jobs.append(dict(name='AV', X=(PTR['A_x'], 0, S*640*2), lda=640, W=(PTR['A_wqkv'], 0, 640*1920*2), ldb=1920, K=640,
                     mode='COL', epi=epi_col, O=(PTR['ws'], WS['VA'], 4*MB), apart=True, noff=1280, mt=8, nt=5, nbase=1280))
    return jobs

def out_jobs():
    S = 2048
    jobs = []
    def base_b(e):
        e.i('s_lshl_b32 s64, s53, 1')
        e.i('s_add_u32 s64, s64, 1280')
    def base_a(e):
        e.i('s_lshl_b32 s64, s53, 1')
    jobs.append(dict(name='OB', X=(PTR['ws'], WS['CTX'], 16*MB), lda=4096, W=(PTR['B_wo'], 0, 4096*640*2), ldb=640, K=4096,
                     mode='ROW', epi=epi_row_plain, pitch=2560, base=base_b, O=(PTR['out'], 0, S*1280*2), mt=16, nt=10))
    jobs.append(dict(name='OA', X=(PTR['ws'], WS['OA'], S*640*2), lda=640, W=(PTR['A_wo'], 0, 640*640*2), ldb=640, K=640,
                     mode='ROW', epi=epi_row_plain, pitch=2560, base=base_a, O=(PTR['out'], 0, S*1280*2), mt=16, nt=10))
    return jobs
```

```python
import sys
from emit import Emitter
import gemm, attn

def kd(name, nv, ns=102):
    acc = (nv + 3) // 4 * 4
    return f'''.section .rodata,"a"
.p2align 6
.amdhsa_kernel {name}
  .amdhsa_next_free_vgpr {nv}
  .amdhsa_next_free_sgpr {ns}
  .amdhsa_accum_offset {acc}
  .amdhsa_group_segment_fixed_size 0
  .amdhsa_kernarg_size 96
  .amdhsa_user_sgpr_count 2
  .amdhsa_user_sgpr_kernarg_segment_ptr 1
  .amdhsa_system_sgpr_workgroup_id_x 1
.end_amdhsa_kernel
'''

def main(out):
    ref = open('concat_heads__mha_block__compressed_kv_cla__prompt.s.ref').read().splitlines()
    head = [l for l in ref if l.startswith(';') and '@launch' not in l and 'Override' not in l and 'grid=ceil' not in l]
    e = Emitter()
    c1 = gemm.GemmCfg(256, 128, 4, 2)
    c3 = gemm.GemmCfg(128, 64, 2, 1)
    n1 = gemm.gemm_kernel(e, 'proj_kernel', c1, gemm.proj_jobs())
    attn.attn_kernel(e, 'attn_kernel')
    n3 = gemm.gemm_kernel(e, 'outp_kernel', c3, gemm.out_jobs())
    txt = '\n'.join(head) + '\n'
    txt += f'; @launch kernel=proj_kernel grid=({n1},1,1) block=(256,1,1) lds={c1.lds}\n'
    txt += f'; @launch kernel=attn_kernel grid=(512,1,1) block=(256,1,1) lds=65536\n'
    txt += f'; @launch kernel=outp_kernel grid=({n3},1,1) block=(256,1,1) lds={c3.lds}\n'
    txt += '.amdgcn_target "amdgcn-amd-amdhsa--gfx950"\n.text\n'
    txt += e.text()
    txt += kd('proj_kernel', c1.nv) + kd('attn_kernel', 256) + kd('outp_kernel', c3.nv)
    open(out, 'w').write(txt)

main(sys.argv[1] if len(sys.argv) > 1 else 'concat_heads__mha_block__compressed_kv_cla__prompt.s')
```

```python
from emit import Emitter
from gemm import PTR, WS, MB, make_srd, load_ptrs, f32bits

THR = 16.0

def interleave(e, mf, others):
    n = len(mf)
    k = len(others)
    pos = 0
    for i, m in enumerate(mf):
        e.i(m)
        tgt = (k * (i + 1) + n - 1) // n
        while pos < tgt:
            e.i(others[pos]); pos += 1
    while pos < k:
        e.i(others[pos]); pos += 1

def maxtree(S, out, t):
    L = [f'v_max3_f32 v{out}, v{S}, v{S+1}, v{S+2}', f'v_max3_f32 v{t}, v{S+3}, v{S+4}, v{S+5}']
    for a in range(6, 14, 4):
        L.append(f'v_max3_f32 v{out}, v{out}, v{S+a}, v{S+a+1}')
        L.append(f'v_max3_f32 v{t}, v{t}, v{S+a+2}, v{S+a+3}')
    L.append(f'v_max3_f32 v{out}, v{out}, v{S+14}, v{S+15}')
    L.append(f'v_max_f32 v{out}, v{out}, v{t}')
    return L

def rare_fix(e, S, MN, O, nO, lregs, mx, t0, t1, first):
    e.settle()
    for x in maxtree(S, mx, t0):
        e.i(x)
    e.i(f'v_mov_b32 v{t0}, v{mx}')
    e.i(f'v_mov_b32 v{t1}, v{mx}')
    e.i(f'v_permlane32_swap_b32 v{t0}, v{t1}')
    e.i(f'v_max_f32 v{mx}, v{t0}, v{t1}')
    if not first:
        e.i(f'v_max_f32 v{mx}, 0, v{mx}')
    for r in range(16):
        e.i(f'v_sub_f32 v{S+r}, v{S+r}, v{mx}')
        e.i(f'v_sub_f32 v{MN+r}, v{MN+r}, v{mx}')
    if not first:
        e.i(f'v_sub_f32 v{t0}, 0, v{mx}')
        e.i(f'v_exp_f32 v{t0}, v{t0}')
        for r in range(nO):
            e.i(f'v_mul_f32 v{O+r}, v{O+r}, v{t0}')
        for r in lregs:
            e.i(f'v_mul_f32 v{r}, v{r}, v{t0}')
    e.settle()

def attn_b(e):
    KD, VD = 8, 12
    KR, VR = 16, 24
    Q, O, S0, S1, MN, P, KF, VF = 32, 64, 128, 144, 160, 176, 184, 216
    L = [248, 249, 250, 251]
    MX, T0, T1 = 252, 253, 254
    SS = [S0, S1]
    rare_sites = []
    e.i('s_and_b32 s53, s3, 31')
    e.i('s_lshr_b32 s4, s3, 5')
    make_srd(e, 40, PTR['ws'], WS['KB'], 16 * MB)
    make_srd(e, 44, PTR['ws'], WS['VB'], 16 * MB)
    e.i('v_and_b32 v1, 63, v0')
    e.i('v_lshrrev_b32 v2, 6, v0')
    e.i('v_readfirstlane_b32 s57, v2')
    e.i('v_lshrrev_b32 v2, 4, v1')
    e.i('v_and_b32 v3, 15, v1')
    e.i('s_lshl_b32 s60, s53, 11')
    e.i('s_lshl_b32 s61, s57, 4')
    e.i('s_add_u32 s60, s60, s61')
    e.i('v_add_u32 v4, s60, v2')
    e.i('v_lshlrev_b32 v4, 8, v4')
    for n in range(4):
        e.i(f'v_add_u32 v5, {4*n}, v2')
        e.i('v_xor_b32 v5, v5, v3')
        e.i(f'v_lshl_add_u32 v{KD+n}, v5, 4, v4')
    e.i('v_lshrrev_b32 v4, 3, v1')
    e.i('v_and_b32 v3, 7, v1')
    e.i('s_lshl_b32 s60, s53, 7')
    e.i('s_lshl_b32 s61, s57, 5')
    e.i('s_add_u32 s60, s60, s61')
    e.i('v_add_u32 v4, s60, v4')
    e.i('v_lshlrev_b32 v4, 12, v4')
    for n in range(4):
        e.i(f'v_add_u32 v5, {4*n}, v2')
        e.i('v_and_b32 v5, 7, v5')
        e.i('v_xor_b32 v5, v5, v3')
        e.i('v_lshl_add_u32 v5, v5, 4, v4')
        e.i(f'v_add_u32 v{VD+n}, {n*(8*4096-1024)}, v5')
    e.i('v_and_b32 v2, 31, v1')
    e.i('v_lshrrev_b32 v3, 5, v1')
    e.i('v_and_b32 v4, 15, v1')
    e.i('v_xor_b32 v4, v4, v3')
    e.i('v_lshlrev_b32 v4, 4, v4')
    e.i(f'v_lshl_add_u32 v{KR}, v2, 8, v4')
    for t in range(1, 8):
        e.i(f'v_xor_b32 v{KR+t}, {32*t}, v{KR}')
    e.i('v_bfe_u32 v4, v1, 1, 3')
    e.i('v_xor_b32 v4, v4, v3')
    e.i('v_lshlrev_b32 v4, 4, v4')
    e.i(f'v_lshl_add_u32 v{VR}, v2, 7, v4')
    e.i(f'v_add_u32 v{VR}, 16384, v{VR}')
    for c in range(1, 4):
        e.i(f'v_xor_b32 v{VR+c}, {32*c}, v{VR}')
    e.i('s_lshl_b32 s62, s57, 12')
    e.i('s_mov_b32 s67, 0')
    e.i('s_sub_u32 s52, 15, s4')
    qloop = e.newlabel('bq')
    e.label(qloop)

    def dmaK(buf):
        e.i(f's_add_u32 m0, s62, {buf*32768}')
        for n in range(4):
            e.i(f'buffer_load_dwordx4 v{KD+n}, s[40:43], s54 offen offset:{1024*n} lds')
        e.i('s_add_u32 s54, s54, 16384')
    def dmaV(buf):
        e.i(f's_add_u32 m0, s62, {buf*32768+16384}')
        for n in range(4):
            e.i(f'buffer_load_dwordx4 v{VD+n}, s[44:47], s55 offen offset:{1024*n} lds')
        e.i('s_add_u32 s55, s55, 128')
    def rdK(buf, j):
        return [f'ds_read_b128 v[{KF+4*t}:{KF+4*t+3}], v{KR+t} offset:{buf*32768+j*8192}' for t in range(8)]
    def rdV(buf, j):
        r = []
        for t in range(2):
            for blk in range(4):
                f = VF + 4 * (t * 4 + blk)
                r.append(f'ds_read_b128 v[{f}:{f+3}], v{VR+2*j+t} offset:{buf*32768+blk*4096}')
        return r
    def qk(S):
        r = []
        for t in range(8):
            c = f'v[{MN}:{MN+15}]' if t == 0 else f'v[{S}:{S+15}]'
            r.append(f'v_mfma_f32_32x32x16_bf16 v[{S}:{S+15}], v[{KF+4*t}:{KF+4*t+3}], v[{Q+4*t}:{Q+4*t+3}], {c}')
        return r
    def pv():
        r = []
        for t in range(2):
            for blk in range(4):
                f = VF + 4 * (t * 4 + blk)
                r.append(f'v_mfma_f32_32x32x16_bf16 v[{O+16*blk}:{O+16*blk+15}], v[{f}:{f+3}], v[{P+4*t}:{P+4*t+3}], v[{O+16*blk}:{O+16*blk+15}]')
        return r
    def softmax(S):
        r = []
        for p in range(8):
            a, b = S + 2 * p, S + 2 * p + 1
            r.append(f'v_exp_f32 v{a}, v{a}')
            r.append(f'v_exp_f32 v{b}, v{b}')
            if p >= 1:
                a2, b2 = S + 2 * (p - 1), S + 2 * (p - 1) + 1
                r.append(f'v_add_f32 v{L[(2*p-2)%4]}, v{L[(2*p-2)%4]}, v{a2}')
                r.append(f'v_add_f32 v{L[(2*p-1)%4]}, v{L[(2*p-1)%4]}, v{b2}')
                r.append(f'v_cvt_pk_bf16_f32 v{P+p-1}, v{a2}, v{b2}')
        r.append(f'v_add_f32 v{L[2]}, v{L[2]}, v{S+14}')
        r.append(f'v_add_f32 v{L[3]}, v{L[3]}, v{S+15}')
        r.append(f'v_cvt_pk_bf16_f32 v{P+7}, v{S+14}, v{S+15}')
        return r
    def check(S):
        lr, lb = e.newlabel('brare'), e.newlabel('bback')
        e.i(f'v_cmp_lt_f32 vcc, {THR}, v{MX}')
        e.i(f's_cbranch_vccnz {lr}')
        e.raw(f'{lb}:')
        rare_sites.append((lr, lb, S))

    e.i('s_barrier')
    e.i('s_mov_b32 s54, 0')
    e.i('s_mov_b32 s55, 0')
    dmaK(0); dmaV(0); dmaK(1)
    make_srd(e, 48, PTR['ws'], WS['QB'], 16 * MB)
    e.i('v_and_b32 v2, 31, v1')
    e.i('s_lshl_b32 s60, s53, 11')
    e.i('s_lshl_b32 s61, s52, 7')
    e.i('s_add_u32 s60, s60, s61')
    e.i('s_lshl_b32 s61, s57, 5')
    e.i('s_add_u32 s60, s60, s61')
    e.i('v_add_u32 v2, s60, v2')
    e.i('v_lshlrev_b32 v2, 8, v2')
    e.i('v_lshrrev_b32 v3, 5, v1')
    e.i('v_lshl_add_u32 v2, v3, 4, v2')
    for t in range(8):
        e.i(f'buffer_load_dwordx4 v[{Q+4*t}:{Q+4*t+3}], v2, s[48:51], 0 offen offset:{32*t}')
    for r in range(64):
        e.i(f'v_mov_b32 v{O+r}, 0')
    for r in range(16):
        e.i(f'v_mov_b32 v{MN+r}, 0')
    for r in L:
        e.i(f'v_mov_b32 v{r}, 0')
    e.i('s_waitcnt vmcnt(0)')
    e.i('s_barrier')
    e.i('s_mov_b32 s70, 1')
    for x in rdK(0, 0):
        e.i(x)
    for x in qk(S0):
        e.i(x)
    ldiag = e.newlabel('bdiag')
    e.i('s_cmp_eq_u32 s52, 0')
    e.settle()
    e.i(f's_cbranch_scc1 {ldiag}')
    rare_fix(e, S0, MN, O, 64, L, MX, T0, T1, True)
    e.i('s_mov_b32 s70, 0')
    e.i(f'v_mov_b32 v{MX}, 0')
    for x in rdK(0, 1):
        e.i(x)
    e.i('s_waitcnt lgkmcnt(0)')
    e.i('s_barrier')
    dmaK(0)
    dmaV(1)
    e.i('s_mov_b32 s56, s52')
    loop = e.newlabel('bl')
    e.label(loop)
    for tp in range(2):
        buf, nb = tp, 1 - tp
        for j in range(2):
            cur, nxt = SS[j], SS[1 - j]
            check(cur)
            interleave(e, qk(nxt), rdV(buf, j) + softmax(cur))
            kreads = rdK(nb, 0) if j == 0 else rdK(nb, 1)
            interleave(e, pv(), kreads[:3] + maxtree(nxt, MX, T0) + kreads[3:])
        e.i('s_waitcnt vmcnt(0)')
        e.settle()
        e.i('s_barrier')
        if tp == 1:
            lsk = e.newlabel('bsk')
            e.i('s_cmp_eq_u32 s56, 1')
            e.i(f's_cbranch_scc1 {lsk}')
            dmaK(nb)
            e.label(lsk)
        else:
            dmaK(nb)
        dmaV(buf)
    e.i('s_sub_u32 s56, s56, 1')
    e.i('s_cmp_lg_u32 s56, 0')
    e.settle()
    e.i(f's_cbranch_scc1 {loop}')
    e.label(ldiag)
    lend = e.newlabel('bdend')
    for j4 in range(4):
        buf, j = j4 >> 1, j4 & 1
        if j4 == 0:
            lskip = e.newlabel('bsk')
            e.i('s_cmp_lg_u32 s52, 0')
            e.i(f's_cbranch_scc1 {lskip}')
            dmaV(1)
            e.label(lskip)
        if j4 == 2:
            e.i('s_waitcnt vmcnt(0)')
            e.settle()
            e.i('s_barrier')
        lnext = e.newlabel('bdn')
        e.i(f's_cmp_lt_u32 s57, {j4}')
        e.settle()
        e.i(f's_cbranch_scc1 {lnext}')
        for x in rdK(buf, j):
            e.i(x)
        for x in qk(S0):
            e.i(x)
        for x in rdV(buf, j):
            e.i(x)
        lnm = e.newlabel('bnm')
        e.i(f's_cmp_lg_u32 s57, {j4}')
        e.settle()
        e.i(f's_cbranch_scc1 {lnm}')
        e.i('v_and_b32 v2, 31, v1')
        e.i('v_lshrrev_b32 v3, 5, v1')
        e.i('v_lshlrev_b32 v3, 2, v3')
        e.i('v_sub_u32 v2, v2, v3')
        e.i('v_mov_b32 v4, 0xff800000')
        for r in range(16):
            kk = 8 * (r >> 2) + (r & 3)
            e.i(f'v_cmp_gt_i32 vcc, {kk}, v2')
            e.i(f'v_cndmask_b32 v{S0+r}, v{S0+r}, v4, vcc')
        e.label(lnm)
        lfirst, lcont = e.newlabel('bf'), e.newlabel('bc')
        e.i('s_cmp_eq_u32 s70, 1')
        e.i(f's_cbranch_scc1 {lfirst}')
        for x in maxtree(S0, MX, T0):
            e.i(x)
        check(S0)
        e.i(f's_branch {lcont}')
        e.label(lfirst)
        rare_fix(e, S0, MN, O, 64, L, MX, T0, T1, True)
        e.i('s_mov_b32 s70, 0')
        e.label(lcont)
        for x in softmax(S0):
            e.i(x)
        for x in pv():
            e.i(x)
        e.label(lnext)
    e.settle()
    e.i(f'v_add_f32 v{L[0]}, v{L[0]}, v{L[1]}')
    e.i(f'v_add_f32 v{L[2]}, v{L[2]}, v{L[3]}')
    e.i(f'v_add_f32 v{L[0]}, v{L[0]}, v{L[2]}')
    e.i(f'v_mov_b32 v{T0}, v{L[0]}')
    e.i(f'v_mov_b32 v{T1}, v{L[0]}')
    e.i(f'v_permlane32_swap_b32 v{T0}, v{T1}')
    e.i(f'v_add_f32 v{T0}, v{T0}, v{T1}')
    e.i(f'v_rcp_f32 v{T0}, v{T0}')
    make_srd(e, 48, PTR['ws'], WS['CTX'], 16 * MB)
    e.i('v_and_b32 v2, 31, v1')
    e.i('s_lshl_b32 s60, s52, 7')
    e.i('s_lshl_b32 s61, s57, 5')
    e.i('s_add_u32 s60, s60, s61')
    e.i('v_add_u32 v2, s60, v2')
    e.i('v_lshlrev_b32 v2, 5, v2')
    e.i('v_lshrrev_b32 v3, 5, v1')
    e.i('v_lshl_add_u32 v2, v3, 3, v2')
    e.i('s_lshl_b32 s61, s53, 19')
    for blk in range(4):
        for g in range(4):
            a = O + 16 * blk + 4 * g
            t = 128 + 8 * ((blk * 4 + g) % 4)
            if g % 2 == 0:
                e.i(f's_add_u32 s60, s61, {(blk*2+(g>>1))*65536}')
            for i in range(4):
                e.i(f'v_mul_f32 v{t+2+i}, v{a+i}, v{T0}')
            e.i(f'v_cvt_pk_bf16_f32 v{t}, v{t+2}, v{t+3}')
            e.i(f'v_cvt_pk_bf16_f32 v{t+1}, v{t+4}, v{t+5}')
            e.i(f'buffer_store_dwordx2 v[{t}:{t+1}], v2, s[48:51], s60 offen offset:{16*(g&1)}')
    e.i('s_add_u32 s67, s67, 1')
    e.i('s_mov_b32 s52, s4')
    e.i('s_cmp_eq_u32 s67, 1')
    e.settle()
    e.i(f's_cbranch_scc1 {qloop}')
    e.i('s_endpgm')
    for lr, lb, S in rare_sites:
        e.label(lr)
        e._nop(16)
        rare_fix(e, S, MN, O, 64, L, MX, T0, T1, False)
        e.i(f's_branch {lb}')

def attn_a(e):
    KD, VD = 8, 12
    KR, VR = 16, 18
    Q, O, MN, SB, P, KF, VF = 32, 64, 96, 128, 192, 208, 224
    MX = [240, 241]
    T0, T1 = 242, 243
    rare_sites = []
    def Sreg(par, qt):
        return SB + 32 * par + 16 * qt
    e.i('s_and_b32 s53, s3, 31')
    e.i('s_lshr_b32 s52, s3, 5')
    make_srd(e, 40, PTR['ws'], WS['KA'], 4 * MB)
    make_srd(e, 44, PTR['ws'], WS['VA'], 4 * MB)
    e.i('v_and_b32 v1, 63, v0')
    e.i('v_lshrrev_b32 v2, 6, v0')
    e.i('v_readfirstlane_b32 s57, v2')
    e.i('v_lshrrev_b32 v2, 2, v1')
    e.i('v_bfe_u32 v3, v1, 4, 2')
    e.i('v_and_b32 v4, 3, v1')
    e.i('v_xor_b32 v4, v4, v3')
    e.i('s_lshl_b32 s60, s53, 11')
    e.i('s_lshl_b32 s61, s57, 5')
    e.i('s_add_u32 s60, s60, s61')
    e.i('v_add_u32 v2, s60, v2')
    e.i('v_lshlrev_b32 v2, 6, v2')
    e.i(f'v_lshl_add_u32 v{KD}, v4, 4, v2')
    e.i('v_lshrrev_b32 v2, 4, v1')
    e.i('v_and_b32 v3, 15, v1')
    e.i('s_lshl_b32 s61, s57, 3')
    e.i('s_lshl_b32 s60, s53, 5')
    e.i('s_add_u32 s60, s60, s61')
    for n in range(2):
        e.i(f'v_add_u32 v4, {4*n}, v2')
        e.i('v_add_u32 v5, s61, v4')
        e.i('v_and_b32 v5, 15, v5')
        e.i('v_xor_b32 v5, v5, v3')
        e.i('v_add_u32 v4, s60, v4')
        e.i('v_lshlrev_b32 v4, 12, v4')
        e.i('v_lshl_add_u32 v4, v5, 4, v4')
        e.i(f'v_subrev_u32 v{VD+n}, {1024*n}, v4')
    e.i('v_and_b32 v2, 31, v1')
    e.i('v_lshrrev_b32 v3, 5, v1')
    e.i('v_bfe_u32 v4, v1, 2, 2')
    e.i('v_xor_b32 v4, v4, v3')
    e.i('v_lshlrev_b32 v4, 4, v4')
    e.i(f'v_lshl_add_u32 v{KR}, v2, 6, v4')
    e.i(f'v_xor_b32 v{KR+1}, 32, v{KR}')
    e.i('v_and_b32 v4, 15, v1')
    e.i('v_xor_b32 v4, v4, v3')
    e.i('v_lshlrev_b32 v4, 4, v4')
    e.i(f'v_lshl_add_u32 v{VR}, v2, 8, v4')
    e.i(f'v_add_u32 v{VR}, 8192, v{VR}')
    for c in range(1, 8):
        e.i(f'v_xor_b32 v{VR+c}, {32*c}, v{VR}')
    e.i('s_lshl_b32 s62, s57, 11')

    def dmaK(buf):
        e.i(f's_add_u32 m0, s62, {buf*16384}')
        for n in range(2):
            e.i(f'buffer_load_dwordx4 v{KD}, s[40:43], s54 offen offset:{1024*n} lds')
        e.i('s_add_u32 s54, s54, 8192')
    def dmaV(buf):
        e.i(f's_add_u32 m0, s62, {buf*16384+8192}')
        for n in range(2):
            e.i(f'buffer_load_dwordx4 v{VD+n}, s[44:47], s55 offen offset:{1024*n} lds')
        e.i('s_add_u32 s55, s55, 256')
    def rdK(buf, j, par):
        return [f'ds_read_b128 v[{KF+8*par+4*t}:{KF+8*par+4*t+3}], v{KR+t} offset:{buf*16384+j*2048}' for t in range(2)]
    def rdV(buf, j, par):
        return [f'ds_read_b128 v[{VF+8*par+4*t}:{VF+8*par+4*t+3}], v{VR+2*j+t} offset:{buf*16384}' for t in range(2)]
    def qk(par):
        r = []
        for qt in range(2):
            S = Sreg(par, qt)
            for t in range(2):
                c = f'v[{MN+16*qt}:{MN+16*qt+15}]' if t == 0 else f'v[{S}:{S+15}]'
                f = KF + 8 * par + 4 * t
                r.append(f'v_mfma_f32_32x32x16_bf16 v[{S}:{S+15}], v[{f}:{f+3}], v[{Q+8*qt+4*t}:{Q+8*qt+4*t+3}], {c}')
        return r
    def pv(par):
        r = []
        for qt in range(2):
            for t in range(2):
                f = VF + 8 * par + 4 * t
                r.append(f'v_mfma_f32_32x32x16_bf16 v[{O+16*qt}:{O+16*qt+15}], v[{f}:{f+3}], v[{P+8*qt+4*t}:{P+8*qt+4*t+3}], v[{O+16*qt}:{O+16*qt+15}]')
        return r
    def softmax(par):
        r = []
        for qt in range(2):
            S = Sreg(par, qt)
            for p in range(8):
                a, b = S + 2 * p, S + 2 * p + 1
                r.append(f'v_exp_f32 v{a}, v{a}')
                r.append(f'v_exp_f32 v{b}, v{b}')
                if p >= 1:
                    r.append(f'v_cvt_pk_bf16_f32 v{P+8*qt+p-1}, v{a-2}, v{b-2}')
            r.append(f'v_cvt_pk_bf16_f32 v{P+8*qt+7}, v{S+14}, v{S+15}')
        return r
    def check(par):
        lr, lb = e.newlabel('arare'), e.newlabel('aback')
        e.i(f'v_max_f32 v{T1}, v{MX[0]}, v{MX[1]}')
        e.i(f'v_cmp_lt_f32 vcc, {THR}, v{T1}')
        e.i(f's_cbranch_vccnz {lr}')
        e.raw(f'{lb}:')
        rare_sites.append((lr, lb, par))

    e.i('s_mov_b32 s54, 0')
    e.i('s_mov_b32 s55, 0')
    dmaK(0); dmaV(0); dmaK(1)
    make_srd(e, 48, PTR['ws'], WS['QA'], 4 * MB)
    e.i('v_and_b32 v2, 31, v1')
    e.i('s_lshl_b32 s60, s53, 11')
    e.i('s_lshl_b32 s61, s52, 8')
    e.i('s_add_u32 s60, s60, s61')
    e.i('s_lshl_b32 s61, s57, 6')
    e.i('s_add_u32 s60, s60, s61')
    e.i('v_add_u32 v2, s60, v2')
    e.i('v_lshlrev_b32 v2, 6, v2')
    e.i('v_lshrrev_b32 v3, 5, v1')
    e.i('v_lshl_add_u32 v2, v3, 4, v2')
    for qt in range(2):
        for t in range(2):
            e.i(f'buffer_load_dwordx4 v[{Q+8*qt+4*t}:{Q+8*qt+4*t+3}], v2, s[48:51], 0 offen offset:{qt*2048+32*t}')
    for r in range(32):
        e.i(f'v_mov_b32 v{O+r}, 0')
        e.i(f'v_mov_b32 v{MN+r}, 0')
    e.i('s_waitcnt vmcnt(0)')
    e.i('s_barrier')
    for x in rdK(0, 0, 0):
        e.i(x)
    for x in qk(0):
        e.i(x)
    for qt in range(2):
        rare_fix(e, Sreg(0, qt), MN + 16 * qt, O + 16 * qt, 16, [], MX[qt], T0, T1, True)
        e.i(f'v_mov_b32 v{MX[qt]}, 0')
    for x in rdK(0, 1, 1):
        e.i(x)
    dmaV(1)
    e.i('s_mov_b32 s56, 8')
    loop = e.newlabel('al')
    e.label(loop)
    for tp in range(2):
        buf, nb = tp, 1 - tp
        for j in range(4):
            par = j & 1
            check(par)
            interleave(e, qk(1 - par), rdV(buf, j, par) + softmax(par))
            kre = rdK(buf, j + 2, par) if j < 2 else rdK(nb, j - 2, par)
            mt = maxtree(Sreg(1 - par, 0), MX[0], T0) + maxtree(Sreg(1 - par, 1), MX[1], T1)
            interleave(e, pv(par), kre + mt)
            if j == 1:
                e.i('s_waitcnt vmcnt(0)')
                e.settle()
                e.i('s_barrier')
                dmaK(buf)
        e.settle()
        e.i('s_barrier')
        dmaV(buf)
    e.i('s_sub_u32 s56, s56, 1')
    e.i('s_cmp_lg_u32 s56, 0')
    e.settle()
    e.i(f's_cbranch_scc1 {loop}')
    e.settle()
    make_srd(e, 48, PTR['ws'], WS['OA'], 40 * 65536)
    e.i('v_and_b32 v2, 31, v1')
    e.i('s_lshl_b32 s60, s52, 8')
    e.i('s_lshl_b32 s61, s57, 6')
    e.i('s_add_u32 s60, s60, s61')
    e.i('v_add_u32 v2, s60, v2')
    e.i('v_lshlrev_b32 v2, 5, v2')
    e.i('v_lshrrev_b32 v3, 5, v1')
    e.i('v_lshlrev_b32 v3, 2, v3')
    e.i('s_mul_i32 s60, s53, 20')
    e.i('v_add_u32 v3, s60, v3')
    for g in range(3):
        e.i(f'v_add_u32 v4, {8*g}, v3')
        e.i('v_lshrrev_b32 v5, 4, v4')
        e.i('v_and_b32 v4, 15, v4')
        e.i('v_lshlrev_b32 v5, 16, v5')
        e.i('v_lshl_add_u32 v5, v4, 1, v5')
        e.i(f'v_add_u32 v{160+g}, v5, v2')
    for qt in range(2):
        Oq = O + 16 * qt
        e.i(f'v_mov_b32 v{T0}, v{Oq+8}')
        e.i(f'v_mov_b32 v{T1}, v{Oq+8}')
        e.i(f'v_permlane32_swap_b32 v{T0}, v{T1}')
        e.i(f'v_rcp_f32 v{T1}, v{T1}')
        for g in range(3):
            t = 128 + 8 * g
            for i in range(4):
                e.i(f'v_mul_f32 v{t+2+i}, v{Oq+4*g+i}, v{T1}')
            e.i(f'v_cvt_pk_bf16_f32 v{t}, v{t+2}, v{t+3}')
            e.i(f'v_cvt_pk_bf16_f32 v{t+1}, v{t+4}, v{t+5}')
            if g == 2:
                e.i('v_cmp_gt_u32 vcc, 32, v1')
                e.i('s_and_saveexec_b64 s[68:69], vcc')
            e.i(f'buffer_store_dwordx2 v[{t}:{t+1}], v{160+g}, s[48:51], 0 offen offset:{1024*qt}')
            if g == 2:
                e.i('s_mov_b64 exec, s[68:69]')
    e.i('s_endpgm')
    for lr, lb, par in rare_sites:
        e.label(lr)
        e._nop(16)
        for qt in range(2):
            rare_fix(e, Sreg(par, qt), MN + 16 * qt, O + 16 * qt, 16, [], MX[qt], T0, T1, False)
        e.i(f's_branch {lb}')

def attn_kernel(e, name):
    e.raw(f'.globl {name}')
    e.raw('.p2align 8')
    e.raw(f'.type {name},@function')
    e.raw(f'{name}:')
    endl = e.newlabel('aend')
    la = e.newlabel('aja')
    e.i('s_cmp_ge_u32 s2, 512')
    e.i(f's_cbranch_scc1 {endl}')
    load_ptrs(e)
    e.i('s_cmp_ge_u32 s2, 256')
    e.i(f's_cbranch_scc1 {la}')
    e.i('s_mov_b32 s3, s2')
    attn_b(e)
    e.label(endl)
    e.i('s_endpgm')
    e.label(la)
    e.i('s_sub_u32 s3, s2, 256')
    attn_a(e)
```

```python
from emit import Emitter
import math

MB = 1 << 20
WS = dict(QA=0, KA=4*MB, VA=8*MB, QB=12*MB, KB=28*MB, VB=44*MB, OA=60*MB, CTX=64*MB)
LOG2E = 1.4426950408889634
SC_A = (20 ** -0.5) * LOG2E
SC_B = (128 ** -0.5) * LOG2E
import struct
def f32bits(x):
    return struct.unpack('<I', struct.pack('<f', x))[0]

PTR = dict(A_x=16, A_wqkv=18, A_wo=20, B_x=22, B_c=24, B_wq=26, B_wuk=28, B_wuv=30, B_wo=32, out=34, dbg=36, ws=38)

def load_ptrs(e):
    e.i('s_load_dwordx16 s[16:31], s[0:1], 0')
    e.i('s_load_dwordx8 s[32:39], s[0:1], 64')
    e.i('s_waitcnt lgkmcnt(0)')

def make_srd(e, d, ptr, off, nbytes):
    if off:
        e.i(f's_add_u32 s{d}, s{ptr}, {off}')
        e.i(f's_addc_u32 s{d+1}, s{ptr+1}, 0')
    else:
        e.i(f's_mov_b32 s{d}, s{ptr}')
        e.i(f's_mov_b32 s{d+1}, s{ptr+1}')
    e.i(f's_and_b32 s{d+1}, s{d+1}, 0xffff')
    e.i(f's_mov_b32 s{d+2}, {nbytes}')
    e.i(f's_mov_b32 s{d+3}, 0x00020000')

class GemmCfg:
    def __init__(s, BM, BN, TM, TN):
        s.BM, s.BN, s.TM, s.TN = BM, BN, TM, TN
        s.RB = BN * 2
        s.SA = BM * 64
        s.SB = 32 * s.RB
        s.nA = s.SA // 1024 // 4
        s.nB = s.SB // 1024 // 4
        s.lds = 3 * (s.SA + s.SB)
        s.ACC = 64
        s.AF = s.ACC + 16 * TM * TN
        s.BF = s.AF + 2 * TM * 4
        s.nv = s.BF + 2 * TN * 4

def gemm_job(e, c, job):
    TM, TN = c.TM, c.TN
    lda2, ldb2 = job['lda'] * 2, job['ldb'] * 2
    nst = job['K'] // 32
    make_srd(e, 40, *job['X'])
    make_srd(e, 44, *job['W'])
    e.i('v_and_b32 v1, 63, v0')
    e.i('v_lshrrev_b32 v2, 6, v0')
    e.i('v_readfirstlane_b32 s57, v2')
    e.i('s_lshr_b32 s58, s57, 1')
    e.i('s_and_b32 s59, s57, 1')
    e.i('v_lshrrev_b32 v2, 2, v1')
    e.i('v_bfe_u32 v3, v1, 4, 2')
    e.i('v_and_b32 v4, 3, v1')
    e.i('v_xor_b32 v4, v4, v3')
    e.i(f's_mul_i32 s60, s57, {16*c.nA}')
    e.i('s_add_u32 s60, s60, s52')
    e.i('v_add_u32 v2, s60, v2')
    e.i(f's_mov_b32 s61, {lda2}')
    e.i('v_mul_lo_u32 v2, v2, s61')
    e.i('v_lshl_add_u32 v2, v4, 4, v2')
    for n in range(c.nA):
        e.i(f'v_add_u32 v{8+n}, {n*(16*lda2-1024)}, v2')
    sh = int(math.log2(c.RB // 16))
    rp = 1024 // c.RB
    e.i(f'v_lshrrev_b32 v2, {sh}, v1')
    e.i(f'v_and_b32 v3, {c.RB//16-1}, v1')
    e.i('v_lshrrev_b32 v4, 2, v3')
    if c.RB == 256:
        e.i('v_bfe_u32 v5, v1, 4, 2')
    else:
        e.i('v_bfe_u32 v5, v1, 4, 1')
    e.i('v_xor_b32 v4, v4, v5')
    e.i('v_and_b32 v3, 3, v3')
    e.i('v_lshlrev_b32 v3, 4, v3')
    e.i('v_lshl_add_u32 v3, v4, 6, v3')
    e.i(f's_mul_i32 s60, s57, {rp*c.nB}')
    e.i('v_add_u32 v2, s60, v2')
    e.i(f's_mov_b32 s61, {ldb2}')
    e.i('v_mul_lo_u32 v2, v2, s61')
    e.i('v_add_u32 v2, v2, v3')
    e.i('s_lshl_b32 s60, s53, 1')
    e.i('v_add_u32 v2, s60, v2')
    for n in range(c.nB):
        e.i(f'v_add_u32 v{12+n}, {n*(rp*ldb2-1024)}, v2')
    e.i('v_and_b32 v2, 31, v1')
    e.i('v_lshrrev_b32 v3, 5, v1')
    e.i('v_bfe_u32 v4, v1, 2, 2')
    e.i('v_xor_b32 v4, v4, v3')
    e.i(f's_mul_i32 s60, s58, {TM*32}')
    e.i('v_add_u32 v2, s60, v2')
    e.i('v_lshlrev_b32 v2, 6, v2')
    e.i('v_lshl_add_u32 v16, v4, 4, v2')
    e.i('v_xor_b32 v17, 32, v16')
    e.i('v_bfe_u32 v2, v1, 2, 2')
    e.i('v_lshrrev_b32 v3, 5, v1')
    e.i('v_lshl_add_u32 v3, v3, 3, v2')
    e.i(f'v_mul_u32_u24 v3, {c.RB}, v3')
    if c.RB == 256:
        e.i('v_mov_b32 v4, v2')
    else:
        e.i('v_lshrrev_b32 v4, 1, v2')
    e.i(f's_mul_i32 s60, s59, {TN}')
    e.i('v_xor_b32 v4, s60, v4')
    e.i('v_lshl_add_u32 v3, v4, 6, v3')
    e.i('v_bfe_u32 v4, v1, 4, 1')
    e.i('v_and_b32 v5, 3, v1')
    e.i('v_lshlrev_b32 v5, 3, v5')
    e.i('v_lshl_add_u32 v5, v4, 5, v5')
    e.i('v_add_u32 v3, v3, v5')
    e.i(f'v_add_u32 v18, {3*c.SA}, v3')
    for tn in range(1, TN):
        e.i(f'v_xor_b32 v{18+tn}, {tn<<6}, v18')
    e.i(f's_mul_i32 s62, s57, {c.nA*1024}')
    e.i(f's_mul_i32 s63, s57, {c.nB*1024}')
    e.i(f's_add_u32 s63, s63, {3*c.SA}')
    e.i('s_mov_b32 s54, 0')
    e.i('s_mov_b32 s55, 0')
    for r in range(16 * TM * TN):
        e.i(f'v_mov_b32 v{c.ACC+r}, 0')

    import os
    X = os.environ.get('XP', '')
    def dma(buf):
        if 'D' in X: return
        e.i(f's_add_u32 m0, s62, {buf*c.SA}')
        for n in range(c.nA):
            e.i(f'buffer_load_dwordx4 v{8+n}, s[40:43], s54 offen offset:{1024*n} lds')
        e.i(f's_add_u32 m0, s63, {buf*c.SB}')
        for n in range(c.nB):
            e.i(f'buffer_load_dwordx4 v{12+n}, s[44:47], s55 offen offset:{1024*n} lds')
        e.i('s_add_u32 s54, s54, 64')
        e.i(f's_add_u32 s55, s55, {32*ldb2}')

    nd = c.nA + c.nB
    dma(0)
    dma(1)
    import os
    if os.environ.get('SHORTK'): nst = 3
    e.i(f's_mov_b32 s56, {nst}')
    loop = e.newlabel('gl')
    done = e.newlabel('gd')
    e.label(loop)
    for b in range(3):
        e.i(f's_waitcnt vmcnt({nd})')
        e.i('s_barrier')
        e.i('s_cmp_le_u32 s56, 2')
        e.i('s_cselect_b32 s42, 0, s42')
        e.i('s_cselect_b32 s46, 0, s46')
        dma((b + 2) % 3)
        def rdA(t, tm):
            if 'R' in X: return
            f = c.AF + (t * TM + tm) * 4
            e.i(f'ds_read_b128 v[{f}:{f+3}], v{16+t} offset:{b*c.SA + tm*2048}')
        def rdB(t, tn):
            if 'R' in X: return
            f = c.BF + (t * TN + tn) * 4
            for hh in range(2):
                e.i(f'ds_read_b64_tr_b16 v[{f+2*hh}:{f+2*hh+1}], v{18+tn} offset:{b*c.SB + (16*t+4*hh)*c.RB}')
        def reads(t):
            seq = []
            for x in range(max(TM, TN)):
                if x < TN: seq.append(('B', x))
                if x < TM: seq.append(('A', x))
            return seq
        def do(rd, t):
            (rdA if rd[0] == 'A' else rdB)(t, rd[1])
        for rd in reads(0):
            do(rd, 0)
        r1 = reads(1)
        for t in range(2):
            k = 0
            for tm in range(TM):
                for tn in range(TN):
                    a = c.AF + (t * TM + tm) * 4
                    bb = c.BF + (t * TN + tn) * 4
                    d = c.ACC + 16 * (tm * TN + tn)
                    if 'M' in X: pass
                    elif job['mode'] == 'ROW':
                        e.i(f'v_mfma_f32_32x32x16_bf16 v[{d}:{d+15}], v[{bb}:{bb+3}], v[{a}:{a+3}], v[{d}:{d+15}]')
                    else:
                        e.i(f'v_mfma_f32_32x32x16_bf16 v[{d}:{d+15}], v[{a}:{a+3}], v[{bb}:{bb+3}], v[{d}:{d+15}]')
                    if t == 0 and r1:
                        do(r1.pop(0), 1)
            while t == 0 and r1:
                do(r1.pop(0), 1)
        e.i('s_sub_u32 s56, s56, 1')
        e.i('s_cmp_eq_u32 s56, 0')
        e.settle()
        e.i(f's_cbranch_scc1 {done}')
    e.i(f's_branch {loop}')
    e.label(done)
    e.i('s_waitcnt vmcnt(0)')
    import os
    if not os.environ.get('NOEPI'):
        job['epi'](e, c, job)
    e.i('s_endpgm')

def cvt_store(e, c, acc, scale_s, voff, soff, imm, tmp):
    src = [acc + i for i in range(4)]
    if scale_s is not None:
        for i in range(4):
            e.i(f'v_mul_f32 v{tmp+2+i}, {scale_s}, v{acc+i}')
        src = [tmp + 2 + i for i in range(4)]
    e.i(f'v_cvt_pk_bf16_f32 v{tmp}, v{src[0]}, v{src[1]}')
    e.i(f'v_cvt_pk_bf16_f32 v{tmp+1}, v{src[2]}, v{src[3]}')
    e.i(f'buffer_store_dwordx2 v[{tmp}:{tmp+1}], v{voff}, s[48:51], {soff} offen offset:{imm}')

def epi_row_plain(e, c, job):
    TM, TN = c.TM, c.TN
    pitch = job['pitch']
    make_srd(e, 48, *job['O'])
    job['base'](e)
    e.i('v_and_b32 v2, 31, v1')
    e.i(f's_mul_i32 s60, s58, {TM*32}')
    e.i('s_add_u32 s60, s60, s52')
    e.i('v_add_u32 v2, s60, v2')
    e.i(f's_mov_b32 s61, {pitch}')
    e.i('v_mul_lo_u32 v2, v2, s61')
    e.i('v_lshrrev_b32 v3, 5, v1')
    e.i('v_lshlrev_b32 v3, 3, v3')
    e.i(f's_mul_i32 s60, s59, {TN*64}')
    e.i('s_add_u32 s60, s60, s64')
    e.i('v_add3_u32 v2, v2, v3, s60')
    sc = None
    if job.get('scale'):
        e.i(f's_mov_b32 s65, {f32bits(job["scale"])}')
        sc = 's65'
    k = 0
    for tm in range(TM):
        e.i(f's_mov_b32 s66, {tm*32*pitch}')
        for tn in range(TN):
            for g in range(4):
                acc = c.ACC + 16 * (tm * TN + tn) + 4 * g
                cvt_store(e, c, acc, sc, 2, 's66', tn * 64 + 16 * g, 24 + 8 * (k % 4))
                k += 1

def epi_row_a(e, c, job):
    TM, TN = c.TM, c.TN
    make_srd(e, 48, *job['O'])
    e.i('v_and_b32 v2, 31, v1')
    e.i(f's_mul_i32 s60, s58, {TM*32}')
    e.i('s_add_u32 s60, s60, s52')
    e.i('v_add_u32 v2, s60, v2')
    e.i('v_lshlrev_b32 v2, 6, v2')
    e.i('v_lshrrev_b32 v3, 5, v1')
    e.i('v_lshlrev_b32 v3, 2, v3')
    e.i(f's_mul_i32 s60, s59, {TN*32}')
    e.i('s_add_u32 s60, s60, s53')
    e.i('v_add_u32 v3, s60, v3')
    sc = None
    if job.get('scale'):
        e.i(f's_mov_b32 s65, {f32bits(job["scale"])}')
        sc = 's65'
    e.i('v_mov_b32 v20, 0')
    e.i('v_mov_b32 v21, 0')
    e.i('v_mov_b32 v22, 0')
    e.i('v_mov_b32 v23, 0')
    k = 0
    for tn in range(TN):
        for g in range(4):
            e.i(f'v_add_u32 v4, {tn*32+8*g}, v3')
            e.i('v_mul_u32_u24 v5, 0xcccd, v4')
            e.i('v_lshrrev_b32 v5, 20, v5')
            e.i('v_mul_u32_u24 v6, 20, v5')
            e.i('v_sub_u32 v6, v4, v6')
            e.i('v_lshlrev_b32 v5, 17, v5')
            e.i('v_lshl_add_u32 v5, v6, 1, v5')
            e.i('v_add_u32 v5, v5, v2')
            for tm in range(TM):
                e.i(f's_mov_b32 s66, {tm*32*64}')
                acc = c.ACC + 16 * (tm * TN + tn) + 4 * g
                cvt_store(e, c, acc, sc, 5, 's66', 0, 24 + 8 * (k % 4))
                k += 1
            e.i('v_cmp_eq_u32 vcc, 16, v6')
            e.i('s_and_saveexec_b64 s[68:69], vcc')
            for tm in range(TM):
                e.i(f's_mov_b32 s66, {tm*32*64}')
                e.i('buffer_store_dwordx2 v[20:21], v5, s[48:51], s66 offen offset:8')
                e.i('buffer_store_dwordx4 v[20:23], v5, s[48:51], s66 offen offset:16')
            e.i('s_mov_b64 exec, s[68:69]')

def epi_col(e, c, job):
    TM, TN = c.TM, c.TN
    make_srd(e, 48, *job['O'])
    e.i('v_lshrrev_b32 v3, 5, v1')
    e.i('v_lshlrev_b32 v3, 3, v3')
    e.i(f's_mul_i32 s60, s58, {TM*32}')
    e.i('s_add_u32 s60, s60, s52')
    e.i('v_add_u32 v3, s60, v3')
    e.i('v_lshlrev_b32 v3, 1, v3')
    e.i('v_and_b32 v2, 31, v1')
    e.i(f's_mul_i32 s60, s59, {TN*32}')
    e.i('s_add_u32 s60, s60, s53')
    e.i('v_add_u32 v2, s60, v2')
    e.i('v_mov_b32 v20, 0x3f803f80')
    e.i('v_mov_b32 v21, 0x3f803f80')
    k = 0
    for tn in range(TN):
        e.i(f'v_add_u32 v4, {tn*32 - job.get("noff", 0)}, v2')
        if job.get('apart'):
            e.i('v_mul_u32_u24 v5, 0xcccd, v4')
            e.i('v_lshrrev_b32 v5, 20, v5')
            e.i('v_mul_u32_u24 v6, 20, v5')
            e.i('v_sub_u32 v6, v4, v6')
            e.i('v_lshl_add_u32 v4, v5, 5, v6')
        e.i('v_lshl_add_u32 v5, v4, 12, v3')
        for tm in range(TM):
            for g in range(4):
                acc = c.ACC + 16 * (tm * TN + tn) + 4 * g
                cvt_store(e, c, acc, None, 5, '0', tm * 64 + 32 * (g >> 1) + 8 * (g & 1), 24 + 8 * (k % 4))
                k += 1
        if job.get('apart'):
            e.i('v_cmp_eq_u32 vcc, 0, v6')
            e.i('s_and_saveexec_b64 s[68:69], vcc')
            e.i(f's_mov_b32 s66, {20*4096}')
            for tm in range(TM):
                for g in range(4):
                    e.i(f'buffer_store_dwordx2 v[20:21], v5, s[48:51], s66 offen offset:{tm*64+32*(g>>1)+8*(g&1)}')
            e.i('s_mov_b64 exec, s[68:69]')

def cvt_pack(e, acc, scale_s, tmp):
    src = [acc + i for i in range(4)]
    if scale_s is not None:
        for i in range(4):
            e.i(f'v_mul_f32 v{tmp+2+i}, {scale_s}, v{acc+i}')
        src = [tmp + 2 + i for i in range(4)]
    e.i(f'v_cvt_pk_bf16_f32 v{tmp}, v{src[0]}, v{src[1]}')
    e.i(f'v_cvt_pk_bf16_f32 v{tmp+1}, v{src[2]}, v{src[3]}')

def epi_row2(e, c, job):
    TM, TN = c.TM, c.TN
    assert TN == 2
    pitch = job['pitch']
    make_srd(e, 48, *job['O'])
    job['base'](e)
    e.i('s_barrier')
    e.i(f's_mul_i32 s60, s57, {TM*4096}')
    e.i('v_and_b32 v2, 31, v1')
    e.i('v_lshlrev_b32 v2, 7, v2')
    e.i('v_lshrrev_b32 v3, 5, v1')
    e.i('v_lshl_add_u32 v2, v3, 3, v2')
    e.i('v_add_u32 v2, s60, v2')
    e.i('v_bfe_u32 v3, v1, 1, 3')
    for ch in range(8):
        e.i(f'v_xor_b32 v4, {ch}, v3')
        e.i(f'v_lshl_add_u32 v{8+ch}, v4, 4, v2')
    sc = None
    if job.get('scale'):
        e.i(f's_mov_b32 s65, {f32bits(job["scale"])}')
        sc = 's65'
    k = 0
    for tm in range(TM):
        for tn in range(TN):
            for g in range(4):
                acc = c.ACC + 16 * (tm * TN + tn) + 4 * g
                tmp = 24 + 8 * (k % 4)
                cvt_pack(e, acc, sc, tmp)
                e.i(f'ds_write_b64 v{8+tn*4+g}, v[{tmp}:{tmp+1}] offset:{tm*4096}')
                k += 1
        e.i('s_waitcnt lgkmcnt(0)')
    e.i('v_lshrrev_b32 v2, 3, v1')
    e.i('v_and_b32 v3, 7, v1')
    e.i('v_lshrrev_b32 v4, 4, v1')
    e.i('v_xor_b32 v4, v4, v3')
    e.i('v_lshlrev_b32 v5, 7, v2')
    e.i('v_lshl_add_u32 v5, v4, 4, v5')
    e.i('v_add_u32 v5, s60, v5')
    e.i('v_xor_b32 v6, 64, v5')
    e.i(f's_mul_i32 s60, s58, {TM*32}')
    e.i('s_add_u32 s60, s60, s52')
    e.i('v_add_u32 v2, s60, v2')
    e.i(f's_mov_b32 s61, {pitch}')
    e.i('v_mul_lo_u32 v2, v2, s61')
    e.i('v_lshlrev_b32 v3, 4, v3')
    e.i(f's_mul_i32 s60, s59, {TN*64}')
    e.i('s_add_u32 s60, s60, s64')
    e.i('v_add3_u32 v2, v2, v3, s60')
    n = TM * 4
    D = 8
    def rd(i):
        f = c.AF + 4 * (i % D)
        e.i(f'ds_read_b128 v[{f}:{f+3}], v{5+(i&1)} offset:{i*1024}')
    for i in range(min(D - 1, n)):
        rd(i)
    for i in range(n):
        if i + D - 1 < n:
            rd(i + D - 1)
        f = c.AF + 4 * (i % D)
        e.i(f's_mov_b32 s66, {i*8*pitch}')
        e.i(f'buffer_store_dwordx4 v[{f}:{f+3}], v2, s[48:51], s66 offen')

def epi_col2(e, c, job):
    TM, TN = c.TM, c.TN
    assert TM == 4
    make_srd(e, 48, *job['O'])
    e.i('s_barrier')
    e.i(f's_mul_i32 s60, s57, {TN*8192}')
    e.i('v_and_b32 v2, 31, v1')
    e.i('v_lshlrev_b32 v2, 8, v2')
    e.i('v_add_u32 v2, s60, v2')
    e.i('v_and_b32 v3, 15, v1')
    e.i('v_lshrrev_b32 v4, 5, v1')
    e.i('v_xor_b32 v3, v3, v4')
    for ch in range(8):
        e.i(f'v_xor_b32 v4, {2*ch}, v3')
        e.i(f'v_lshl_add_u32 v{8+ch}, v4, 4, v2')
    k = 0
    for tn in range(TN):
        for tm in range(TM):
            for g in range(4):
                acc = c.ACC + 16 * (tm * TN + tn) + 4 * g
                tmp = 24 + 8 * (k % 4)
                cvt_pack(e, acc, None, tmp)
                e.i(f'ds_write_b64 v{8+tm*2+(g>>1)}, v[{tmp}:{tmp+1}] offset:{tn*8192+8*(g&1)}')
                k += 1
            e.i('s_waitcnt lgkmcnt(0)')
    e.i('v_lshrrev_b32 v2, 4, v1')
    e.i('v_and_b32 v3, 15, v1')
    e.i('v_lshlrev_b32 v5, 8, v2')
    e.i('v_add_u32 v5, s60, v5')
    for q in range(4):
        e.i(f'v_add_u32 v4, {4*q}, v2')
        e.i('v_xor_b32 v4, v4, v3')
        e.i(f'v_lshl_add_u32 v{8+q}, v4, 4, v5')
    e.i(f's_mul_i32 s60, s58, {TM*32}')
    e.i('s_add_u32 s60, s60, s52')
    e.i('s_lshl_b32 s60, s60, 1')
    e.i('v_lshl_add_u32 v3, v3, 4, s60')
    e.i(f's_mul_i32 s60, s59, {TN*32}')
    e.i('s_add_u32 s60, s60, s53')
    e.i(f's_sub_u32 s60, s60, {job.get("noff", 0)}')
    e.i('v_add_u32 v2, s60, v2')
    e.i('v_mov_b32 v20, 0x3f803f80')
    e.i('v_mov_b32 v21, 0x3f803f80')
    e.i('v_mov_b32 v22, 0x3f803f80')
    e.i('v_mov_b32 v23, 0x3f803f80')
    e.i(f's_mov_b32 s66, {20*4096}')
    n = TN * 8
    D = 8
    def rd(i):
        f = c.AF + 4 * (i % D)
        e.i(f'ds_read_b128 v[{f}:{f+3}], v{8+(i&3)} offset:{i*1024}')
    for i in range(min(D - 1, n)):
        rd(i)
    for i in range(n):
        if i + D - 1 < n:
            rd(i + D - 1)
        f = c.AF + 4 * (i % D)
        a = 12 + (i & 3)
        e.i(f'v_add_u32 v4, {4*i}, v2')
        if job.get('apart'):
            e.i('v_mul_u32_u24 v5, 0xcccd, v4')
            e.i('v_lshrrev_b32 v5, 20, v5')
            e.i('v_mul_u32_u24 v6, 20, v5')
            e.i('v_sub_u32 v6, v4, v6')
            e.i('v_lshl_add_u32 v4, v5, 5, v6')
        e.i(f'v_lshl_add_u32 v{a}, v4, 12, v3')
        e.i(f'buffer_store_dwordx4 v[{f}:{f+3}], v{a}, s[48:51], 0 offen')
        if job.get('apart'):
            e.i('v_cmp_eq_u32 vcc, 0, v6')
            e.i('s_and_saveexec_b64 s[68:69], vcc')
            e.i(f'buffer_store_dwordx4 v[20:23], v{a}, s[48:51], s66 offen')
            e.i('s_mov_b64 exec, s[68:69]')

def gemm_kernel(e, name, c, jobs):
    e.raw(f'.globl {name}')
    e.raw('.p2align 8')
    e.raw(f'.type {name},@function')
    e.raw(f'{name}:')
    total = sum(j['mt'] * j['nt'] for j in jobs)
    e.i(f's_cmp_ge_u32 s2, {total}')
    endl = e.newlabel('gend')
    e.i(f's_cbranch_scc1 {endl}')
    load_ptrs(e)
    start = 0
    labels = []
    for j in jobs:
        l = e.newlabel('job')
        labels.append(l)
        cnt = j['mt'] * j['nt']
        e.i(f's_cmp_lt_u32 s2, {start+cnt}')
        e.i(f's_cbranch_scc1 {l}')
        j['start'] = start
        start += cnt
    e.label(endl)
    e.i('s_endpgm')
    for j, l in zip(jobs, labels):
        e.label(l)
        e.i(f's_sub_u32 s3, s2, {j["start"]}')
        mt = j['mt']
        lm = int(math.log2(mt))
        assert 1 << lm == mt
        if j.get('xcd'):
            e.i('s_and_b32 s4, s3, 7')
            e.i('s_lshr_b32 s3, s3, 3')
            e.i(f's_and_b32 s5, s3, {mt-1}')
            e.i(f's_lshr_b32 s3, s3, {lm}')
            e.i('s_lshl_b32 s3, s3, 3')
            e.i('s_add_u32 s4, s4, s3')
        else:
            e.i(f's_and_b32 s5, s3, {mt-1}')
            e.i(f's_lshr_b32 s4, s3, {lm}')
        e.i(f's_mul_i32 s52, s5, {c.BM}')
        e.i(f's_mul_i32 s53, s4, {c.BN}')
        if j.get('nbase'):
            e.i(f's_add_u32 s53, s53, {j["nbase"]}')
        gemm_job(e, c, j)
    return total

def proj_jobs():
    S = 2048
    jobs = []
    def base_head(e):
        e.i('s_lshl_b32 s64, s53, 12')
    jobs.append(dict(name='BQ', X=(PTR['B_x'], 0, S*640*2), lda=640, W=(PTR['B_wq'], 0, 640*4096*2), ldb=4096, K=640,
                     mode='ROW', epi=epi_row2, pitch=256, base=base_head, O=(PTR['ws'], WS['QB'], 16*MB), scale=SC_B, mt=8, nt=32, xcd=True))
    jobs.append(dict(name='BK', X=(PTR['B_c'], 0, S*512*2), lda=512, W=(PTR['B_wuk'], 0, 512*4096*2), ldb=4096, K=512,
                     mode='ROW', epi=epi_row2, pitch=256, base=base_head, O=(PTR['ws'], WS['KB'], 16*MB), mt=8, nt=32, xcd=True))
    jobs.append(dict(name='BV', X=(PTR['B_c'], 0, S*512*2), lda=512, W=(PTR['B_wuv'], 0, 512*4096*2), ldb=4096, K=512,
                     mode='COL', epi=epi_col2, O=(PTR['ws'], WS['VB'], 16*MB), mt=8, nt=32, xcd=True))
    jobs.append(dict(name='AQ', X=(PTR['A_x'], 0, S*640*2), lda=640, W=(PTR['A_wqkv'], 0, 640*1920*2), ldb=1920, K=640,
                     mode='ROW', epi=epi_row_a, O=(PTR['ws'], WS['QA'], 8*MB), scale=SC_A, mt=8, nt=5))
    jobs.append(dict(name='AK', X=(PTR['A_x'], 0, S*640*2), lda=640, W=(PTR['A_wqkv'], 0, 640*1920*2), ldb=1920, K=640,
                     mode='ROW', epi=epi_row_a, O=(PTR['ws'], WS['QA'], 8*MB), mt=8, nt=5, nbase=640))
    jobs.append(dict(name='AV', X=(PTR['A_x'], 0, S*640*2), lda=640, W=(PTR['A_wqkv'], 0, 640*1920*2), ldb=1920, K=640,
                     mode='COL', epi=epi_col2, O=(PTR['ws'], WS['VA'], 4*MB), apart=True, noff=1280, mt=8, nt=5, nbase=1280))
    return jobs

def out_jobs():
    S = 2048
    jobs = []
    def base_b(e):
        e.i('s_lshl_b32 s64, s53, 1')
        e.i('s_add_u32 s64, s64, 1280')
    def base_a(e):
        e.i('s_lshl_b32 s64, s53, 1')
    jobs.append(dict(name='OB', X=(PTR['ws'], WS['CTX'], 16*MB), lda=4096, W=(PTR['B_wo'], 0, 4096*640*2), ldb=640, K=4096,
                     mode='ROW', epi=epi_row_plain, pitch=2560, base=base_b, O=(PTR['out'], 0, S*1280*2), mt=16, nt=10))
    jobs.append(dict(name='OA', X=(PTR['ws'], WS['OA'], S*640*2), lda=640, W=(PTR['A_wo'], 0, 640*640*2), ldb=640, K=640,
                     mode='ROW', epi=epi_row_plain, pitch=2560, base=base_a, O=(PTR['out'], 0, S*1280*2), mt=16, nt=10))
    return jobs
```

```python
from gemm import *

def out_job(e, job):
    ldb2 = job['ldb'] * 2
    nst = job['K'] // 4 // 32
    A0, BF, T = 32, 160, 176
    make_srd(e, 40, *job['X'])
    make_srd(e, 44, *job['W'])
    e.i('v_and_b32 v1, 63, v0')
    e.i('v_lshrrev_b32 v2, 6, v0')
    e.i('v_readfirstlane_b32 s57, v2')
    e.i('v_and_b32 v2, 31, v1')
    e.i('v_add_u32 v2, s52, v2')
    e.i('v_lshlrev_b32 v2, 5, v2')
    e.i('v_lshrrev_b32 v3, 5, v1')
    e.i('v_lshl_add_u32 v8, v3, 4, v2')
    e.i('v_lshrrev_b32 v2, 3, v1')
    e.i('v_and_b32 v3, 7, v1')
    e.i('v_lshrrev_b32 v4, 2, v3')
    e.i('v_bfe_u32 v5, v1, 4, 1')
    e.i('v_xor_b32 v4, v4, v5')
    e.i('v_and_b32 v3, 3, v3')
    e.i('v_lshlrev_b32 v3, 4, v3')
    e.i('v_lshl_add_u32 v3, v4, 6, v3')
    e.i(f's_mov_b32 s61, {ldb2}')
    e.i('v_mul_lo_u32 v2, v2, s61')
    e.i('v_add_u32 v2, v2, v3')
    e.i('s_lshl_b32 s60, s53, 1')
    e.i('v_add_u32 v2, s60, v2')
    for n in range(4):
        e.i(f'v_add_u32 v{12+n}, {n*(8*ldb2-1024)}, v2')
    e.i('s_lshl_b32 s63, s57, 15')
    e.i('v_bfe_u32 v2, v1, 2, 2')
    e.i('v_lshrrev_b32 v3, 5, v1')
    e.i('v_lshl_add_u32 v3, v3, 3, v2')
    e.i('v_mul_u32_u24 v3, 128, v3')
    e.i('v_lshrrev_b32 v4, 1, v2')
    e.i('v_lshl_add_u32 v3, v4, 6, v3')
    e.i('v_bfe_u32 v4, v1, 4, 1')
    e.i('v_and_b32 v5, 3, v1')
    e.i('v_lshlrev_b32 v5, 3, v5')
    e.i('v_lshl_add_u32 v5, v4, 5, v5')
    e.i('v_add_u32 v3, v3, v5')
    e.i('v_add_u32 v18, s63, v3')
    e.i('v_xor_b32 v19, 64, v18')
    e.i(f's_mul_i32 s54, s57, {nst*2*65536}')
    e.i('s_add_u32 s55, s54, 65536')
    e.i(f's_mul_i32 s58, s57, {nst*32*ldb2}')
    for r in range(128):
        e.i(f'v_accvgpr_write_b32 a{r}, 0')

    def loads(q):
        e.i(f's_add_u32 m0, s63, {q*4096}')
        for n in range(4):
            e.i(f'buffer_load_dwordx4 v{12+n}, s[44:47], s58 offen offset:{1024*n} lds')
        for t in range(2):
            for tm in range(4):
                f = A0 + q * 32 + (t * 4 + tm) * 4
                e.i(f'buffer_load_dwordx4 v[{f}:{f+3}], v8, s[40:43], s{54+t} offen offset:{1024*tm}')
        e.i('s_add_u32 s54, s54, 131072')
        e.i('s_add_u32 s55, s55, 131072')
        e.i(f's_add_u32 s58, s58, {32*ldb2}')
    def trr(q, t):
        out = []
        for tn in range(2):
            f = BF + (t * 2 + tn) * 4
            for hh in range(2):
                out.append(f'ds_read_b64_tr_b16 v[{f+2*hh}:{f+2*hh+1}], v{18+tn} offset:{q*4096 + (16*t+4*hh)*128}')
        return out
    def mf(q, t, extra):
        extra = list(extra)
        for tm in range(4):
            for tn in range(2):
                a = A0 + q * 32 + (t * 4 + tm) * 4
                b = BF + (t * 2 + tn) * 4
                d = 16 * (tm * 2 + tn)
                e.i(f'v_mfma_f32_32x32x16_bf16 a[{d}:{d+15}], v[{b}:{b+3}], v[{a}:{a+3}], a[{d}:{d+15}]')
                if extra:
                    e.i(extra.pop(0))
    for q in range(3):
        loads(q)
    e.i(f's_mov_b32 s56, {nst}')
    e.i('s_waitcnt vmcnt(24)')
    for x in trr(0, 0):
        e.i(x)
    loop = e.newlabel('ol')
    done = e.newlabel('od')
    e.label(loop)
    for q in range(4):
        e.i('s_cmp_le_u32 s56, 3')
        e.i('s_cselect_b32 s42, 0, s42')
        e.i('s_cselect_b32 s46, 0, s46')
        loads((q + 3) % 4)
        mf(q, 0, trr(q, 1))
        e.i('s_waitcnt vmcnt(24)')
        mf(q, 1, trr((q + 1) % 4, 0))
        e.i('s_sub_u32 s56, s56, 1')
        e.i('s_cmp_eq_u32 s56, 0')
        e.settle()
        e.i(f's_cbranch_scc1 {done}')
    e.i(f's_branch {loop}')
    e.label(done)
    e.i('s_waitcnt vmcnt(0) lgkmcnt(0)')
    e._nop(16)
    e.i('v_lshlrev_b32 v2, 4, v1')
    e.i('v_add_u32 v3, s63, v2')
    for q in range(32):
        e.i(f'ds_write_b128 v3, a[{4*q}:{4*q+3}] offset:{q*1024}')
        if q % 8 == 7:
            e.i('s_waitcnt lgkmcnt(0)')
    e.i('s_barrier')
    e.i('s_lshl_b32 s60, s57, 13')
    e.i('v_add_u32 v3, s60, v2')
    e.i('v_add_u32 v4, 0x10000, v3')
    for w in range(4):
        for q in range(8):
            f = A0 + w * 32 + 4 * q
            e.i(f'ds_read_b128 v[{f}:{f+3}], v{3+(w>>1)} offset:{(w&1)*32768 + q*1024}')
        if w in (0, 2):
            e.i('s_waitcnt lgkmcnt(0)')
        if w == 1:
            for r in range(32):
                e.i(f'v_add_f32 v{A0+r}, v{A0+r}, v{A0+32+r}')
        if w == 3:
            for r in range(32):
                e.i(f'v_add_f32 v{A0+64+r}, v{A0+64+r}, v{A0+96+r}')
    for r in range(32):
        e.i(f'v_add_f32 v{A0+r}, v{A0+r}, v{A0+64+r}')
    make_srd(e, 48, *job['O'])
    e.i('v_and_b32 v2, 31, v1')
    e.i('s_lshl_b32 s60, s57, 5')
    e.i('s_add_u32 s60, s60, s52')
    e.i('v_add_u32 v2, s60, v2')
    e.i('v_mul_u32_u24 v2, 2560, v2')
    e.i('v_lshrrev_b32 v3, 5, v1')
    e.i('v_lshlrev_b32 v3, 3, v3')
    e.i('s_lshl_b32 s60, s53, 1')
    e.i(f's_add_u32 s60, s60, {job["obase"]}')
    e.i('v_add3_u32 v2, v2, v3, s60')
    for tn in range(2):
        for g in range(4):
            a = A0 + 16 * tn + 4 * g
            t = T + 2 * (tn * 4 + g)
            e.i(f'v_cvt_pk_bf16_f32 v{t}, v{a}, v{a+1}')
            e.i(f'v_cvt_pk_bf16_f32 v{t+1}, v{a+2}, v{a+3}')
            e.i(f'buffer_store_dwordx2 v[{t}:{t+1}], v2, s[48:51], 0 offen offset:{tn*64+16*g}')
    e.i('s_endpgm')

def outp_kernel(e, name):
    S = 2048
    jobs = [dict(X=(PTR['ws'], WS['CTX'], 16*MB), W=(PTR['B_wo'], 0, 4096*640*2), ldb=640, K=4096, O=(PTR['out'], 0, S*1280*2), obase=1280),
            dict(X=(PTR['ws'], WS['OA'], 40*65536), W=(PTR['A_wo'], 0, 640*640*2), ldb=640, K=640, O=(PTR['out'], 0, S*1280*2), obase=0)]
    e.raw(f'.globl {name}')
    e.raw('.p2align 8')
    e.raw(f'.type {name},@function')
    e.raw(f'{name}:')
    endl = e.newlabel('oend')
    l2 = e.newlabel('oj')
    e.i('s_cmp_ge_u32 s2, 320')
    e.i(f's_cbranch_scc1 {endl}')
    load_ptrs(e)
    e.i('s_cmp_ge_u32 s2, 160')
    e.i('s_cselect_b32 s3, 160, 0')
    e.i('s_sub_u32 s3, s2, s3')
    e.i('s_and_b32 s5, s3, 15')
    e.i('s_lshr_b32 s4, s3, 4')
    e.i('s_lshl_b32 s52, s5, 7')
    e.i('s_lshl_b32 s53, s4, 6')
    e.i('s_cmp_ge_u32 s2, 160')
    e.i(f's_cbranch_scc1 {l2}')
    out_job(e, jobs[0])
    e.label(l2)
    out_job(e, jobs[1])
    e.label(endl)
    e.i('s_endpgm')
    return 320
```

```python
import sys
from emit import Emitter
import gemm, attn, outp

def kd(name, nv, ns=102, acc=None):
    acc = acc or (nv + 3) // 4 * 4
    return f'''.section .rodata,"a"
.p2align 6
.amdhsa_kernel {name}
  .amdhsa_next_free_vgpr {nv}
  .amdhsa_next_free_sgpr {ns}
  .amdhsa_accum_offset {acc}
  .amdhsa_group_segment_fixed_size 0
  .amdhsa_kernarg_size 96
  .amdhsa_user_sgpr_count 2
  .amdhsa_user_sgpr_kernarg_segment_ptr 1
  .amdhsa_system_sgpr_workgroup_id_x 1
.end_amdhsa_kernel
'''

def main(out):
    ref = open('concat_heads__mha_block__compressed_kv_cla__prompt.s.ref').read().splitlines()
    head = [l for l in ref if l.startswith(';') and '@launch' not in l and 'Override' not in l and 'grid=ceil' not in l]
    e = Emitter()
    c1 = gemm.GemmCfg(256, 128, 4, 2)
    c3 = gemm.GemmCfg(128, 64, 2, 1)
    n1 = gemm.proj_kernel(e, 'proj_kernel', c1, gemm.proj_jobs())
    attn.attn_kernel(e, 'attn_kernel')
    n3 = outp.outp_kernel(e, 'outp_kernel')
    txt = '\n'.join(head) + '\n'
    txt += f'; @launch kernel=proj_kernel grid=({n1},1,1) block=(512,1,1) lds={c1.lds}\n'
    txt += f'; @launch kernel=attn_kernel grid=(512,1,1) block=(256,1,1) lds=65536\n'
    txt += f'; @launch kernel=outp_kernel grid=({n3},1,1) block=(256,1,1) lds=131072\n'
    txt += '.amdgcn_target "amdgcn-amd-amdhsa--gfx950"\n.text\n'
    txt += e.text()
    txt += kd('proj_kernel', c1.nv) + kd('attn_kernel', 256) + kd('outp_kernel', 384, acc=256)
    open(out, 'w').write(txt)

main(sys.argv[1] if len(sys.argv) > 1 else 'concat_heads__mha_block__compressed_kv_cla__prompt.s')
```

```python
from emit import Emitter
from gemm import PTR, WS, MB, make_srd, load_ptrs, f32bits

THR = 16.0

def interleave(e, mf, others):
    n = len(mf)
    k = len(others)
    pos = 0
    for i, m in enumerate(mf):
        e.i(m)
        tgt = (k * (i + 1) + n - 1) // n
        while pos < tgt:
            e.i(others[pos]); pos += 1
    while pos < k:
        e.i(others[pos]); pos += 1

def maxtree(S, out, t):
    L = [f'v_max3_f32 v{out}, v{S}, v{S+1}, v{S+2}', f'v_max3_f32 v{t}, v{S+3}, v{S+4}, v{S+5}']
    for a in range(6, 14, 4):
        L.append(f'v_max3_f32 v{out}, v{out}, v{S+a}, v{S+a+1}')
        L.append(f'v_max3_f32 v{t}, v{t}, v{S+a+2}, v{S+a+3}')
    L.append(f'v_max3_f32 v{out}, v{out}, v{S+14}, v{S+15}')
    L.append(f'v_max_f32 v{out}, v{out}, v{t}')
    return L

def rare_fix(e, S, MN, O, nO, lregs, mx, t0, t1, first):
    e.settle()
    for x in maxtree(S, mx, t0):
        e.i(x)
    e.i(f'v_mov_b32 v{t0}, v{mx}')
    e.i(f'v_mov_b32 v{t1}, v{mx}')
    e.i(f'v_permlane32_swap_b32 v{t0}, v{t1}')
    e.i(f'v_max_f32 v{mx}, v{t0}, v{t1}')
    if not first:
        e.i(f'v_max_f32 v{mx}, 0, v{mx}')
    for r in range(16):
        e.i(f'v_sub_f32 v{S+r}, v{S+r}, v{mx}')
        e.i(f'v_sub_f32 v{MN+r}, v{MN+r}, v{mx}')
    if not first:
        e.i(f'v_sub_f32 v{t0}, 0, v{mx}')
        e.i(f'v_exp_f32 v{t0}, v{t0}')
        for r in range(nO):
            e.i(f'v_mul_f32 v{O+r}, v{O+r}, v{t0}')
        for r in lregs:
            e.i(f'v_mul_f32 v{r}, v{r}, v{t0}')
    e.settle()

def attn_b(e):
    KD, VD = 8, 12
    KR, VR = 16, 24
    Q, O, S0, S1, MN, P, KF, VF = 32, 64, 128, 144, 160, 176, 184, 216
    L = [248, 249, 250, 251]
    MX, T0, T1 = 252, 253, 254
    SS = [S0, S1]
    rare_sites = []
    e.i('s_and_b32 s53, s3, 31')
    e.i('s_lshr_b32 s4, s3, 5')
    make_srd(e, 40, PTR['ws'], WS['KB'], 16 * MB)
    make_srd(e, 44, PTR['ws'], WS['VB'], 16 * MB)
    e.i('v_and_b32 v1, 63, v0')
    e.i('v_lshrrev_b32 v2, 6, v0')
    e.i('v_readfirstlane_b32 s57, v2')
    e.i('v_lshrrev_b32 v2, 4, v1')
    e.i('v_and_b32 v3, 15, v1')
    e.i('s_lshl_b32 s60, s53, 11')
    e.i('s_lshl_b32 s61, s57, 4')
    e.i('s_add_u32 s60, s60, s61')
    e.i('v_add_u32 v4, s60, v2')
    e.i('v_lshlrev_b32 v4, 8, v4')
    for n in range(4):
        e.i(f'v_add_u32 v5, {4*n}, v2')
        e.i('v_xor_b32 v5, v5, v3')
        e.i(f'v_lshl_add_u32 v{KD+n}, v5, 4, v4')
    e.i('v_lshrrev_b32 v4, 3, v1')
    e.i('v_and_b32 v3, 7, v1')
    e.i('s_lshl_b32 s60, s53, 7')
    e.i('s_lshl_b32 s61, s57, 5')
    e.i('s_add_u32 s60, s60, s61')
    e.i('v_add_u32 v4, s60, v4')
    e.i('v_lshlrev_b32 v4, 12, v4')
    for n in range(4):
        e.i(f'v_add_u32 v5, {4*n}, v2')
        e.i('v_and_b32 v5, 7, v5')
        e.i('v_xor_b32 v5, v5, v3')
        e.i('v_lshl_add_u32 v5, v5, 4, v4')
        e.i(f'v_add_u32 v{VD+n}, {n*(8*4096-1024)}, v5')
    e.i('v_and_b32 v2, 31, v1')
    e.i('v_lshrrev_b32 v3, 5, v1')
    e.i('v_and_b32 v4, 15, v1')
    e.i('v_xor_b32 v4, v4, v3')
    e.i('v_lshlrev_b32 v4, 4, v4')
    e.i(f'v_lshl_add_u32 v{KR}, v2, 8, v4')
    for t in range(1, 8):
        e.i(f'v_xor_b32 v{KR+t}, {32*t}, v{KR}')
    e.i('v_bfe_u32 v4, v1, 1, 3')
    e.i('v_xor_b32 v4, v4, v3')
    e.i('v_lshlrev_b32 v4, 4, v4')
    e.i(f'v_lshl_add_u32 v{VR}, v2, 7, v4')
    e.i(f'v_add_u32 v{VR}, 16384, v{VR}')
    for c in range(1, 4):
        e.i(f'v_xor_b32 v{VR+c}, {32*c}, v{VR}')
    e.i('s_lshl_b32 s62, s57, 12')
    e.i('s_mov_b32 s67, 0')
    e.i('s_sub_u32 s52, 15, s4')
    qloop = e.newlabel('bq')
    e.label(qloop)

    def dmaK(buf):
        e.i(f's_add_u32 m0, s62, {buf*32768}')
        for n in range(4):
            e.i(f'buffer_load_dwordx4 v{KD+n}, s[40:43], s54 offen offset:{1024*n} lds')
        e.i('s_add_u32 s54, s54, 16384')
    def dmaV(buf):
        e.i(f's_add_u32 m0, s62, {buf*32768+16384}')
        for n in range(4):
            e.i(f'buffer_load_dwordx4 v{VD+n}, s[44:47], s55 offen offset:{1024*n} lds')
        e.i('s_add_u32 s55, s55, 128')
    def rdK(buf, j):
        return [f'ds_read_b128 v[{KF+4*t}:{KF+4*t+3}], v{KR+t} offset:{buf*32768+j*8192}' for t in range(8)]
    def rdV(buf, j):
        r = []
        for t in range(2):
            for blk in range(4):
                f = VF + 4 * (t * 4 + blk)
                r.append(f'ds_read_b128 v[{f}:{f+3}], v{VR+2*j+t} offset:{buf*32768+blk*4096}')
        return r
    def qk(S):
        r = []
        for t in range(8):
            c = f'v[{MN}:{MN+15}]' if t == 0 else f'v[{S}:{S+15}]'
            r.append(f'v_mfma_f32_32x32x16_bf16 v[{S}:{S+15}], v[{KF+4*t}:{KF+4*t+3}], v[{Q+4*t}:{Q+4*t+3}], {c}')
        return r
    def pv():
        r = []
        for t in range(2):
            for blk in range(4):
                f = VF + 4 * (t * 4 + blk)
                r.append(f'v_mfma_f32_32x32x16_bf16 v[{O+16*blk}:{O+16*blk+15}], v[{f}:{f+3}], v[{P+4*t}:{P+4*t+3}], v[{O+16*blk}:{O+16*blk+15}]')
        return r
    def softmax(S):
        r = []
        for p in range(8):
            a, b = S + 2 * p, S + 2 * p + 1
            r.append(f'v_exp_f32 v{a}, v{a}')
            r.append(f'v_exp_f32 v{b}, v{b}')
            if p >= 1:
                a2, b2 = S + 2 * (p - 1), S + 2 * (p - 1) + 1
                r.append(f'v_add_f32 v{L[(2*p-2)%4]}, v{L[(2*p-2)%4]}, v{a2}')
                r.append(f'v_add_f32 v{L[(2*p-1)%4]}, v{L[(2*p-1)%4]}, v{b2}')
                r.append(f'v_cvt_pk_bf16_f32 v{P+p-1}, v{a2}, v{b2}')
        r.append(f'v_add_f32 v{L[2]}, v{L[2]}, v{S+14}')
        r.append(f'v_add_f32 v{L[3]}, v{L[3]}, v{S+15}')
        r.append(f'v_cvt_pk_bf16_f32 v{P+7}, v{S+14}, v{S+15}')
        return r
    def check(S):
        lr, lb = e.newlabel('brare'), e.newlabel('bback')
        e.i(f'v_cmp_lt_f32 vcc, {THR}, v{MX}')
        e.i(f's_cbranch_vccnz {lr}')
        e.raw(f'{lb}:')
        rare_sites.append((lr, lb, S))

    e.i('s_barrier')
    e.i('s_mov_b32 s54, 0')
    e.i('s_mov_b32 s55, 0')
    dmaK(0); dmaV(0); dmaK(1)
    make_srd(e, 48, PTR['ws'], WS['QB'], 16 * MB)
    e.i('v_and_b32 v2, 31, v1')
    e.i('s_lshl_b32 s60, s53, 11')
    e.i('s_lshl_b32 s61, s52, 7')
    e.i('s_add_u32 s60, s60, s61')
    e.i('s_lshl_b32 s61, s57, 5')
    e.i('s_add_u32 s60, s60, s61')
    e.i('v_add_u32 v2, s60, v2')
    e.i('v_lshlrev_b32 v2, 8, v2')
    e.i('v_lshrrev_b32 v3, 5, v1')
    e.i('v_lshl_add_u32 v2, v3, 4, v2')
    for t in range(8):
        e.i(f'buffer_load_dwordx4 v[{Q+4*t}:{Q+4*t+3}], v2, s[48:51], 0 offen offset:{32*t}')
    for r in range(64):
        e.i(f'v_mov_b32 v{O+r}, 0')
    for r in range(16):
        e.i(f'v_mov_b32 v{MN+r}, 0')
    for r in L:
        e.i(f'v_mov_b32 v{r}, 0')
    e.i('s_waitcnt vmcnt(0)')
    e.i('s_barrier')
    e.i('s_mov_b32 s70, 1')
    for x in rdK(0, 0):
        e.i(x)
    for x in qk(S0):
        e.i(x)
    ldiag = e.newlabel('bdiag')
    e.i('s_cmp_eq_u32 s52, 0')
    e.settle()
    e.i(f's_cbranch_scc1 {ldiag}')
    rare_fix(e, S0, MN, O, 64, L, MX, T0, T1, True)
    e.i('s_mov_b32 s70, 0')
    e.i(f'v_mov_b32 v{MX}, 0')
    for x in rdK(0, 1):
        e.i(x)
    e.i('s_waitcnt lgkmcnt(0)')
    e.i('s_barrier')
    dmaK(0)
    dmaV(1)
    e.i('s_mov_b32 s56, s52')
    loop = e.newlabel('bl')
    e.label(loop)
    for tp in range(2):
        buf, nb = tp, 1 - tp
        for j in range(2):
            cur, nxt = SS[j], SS[1 - j]
            check(cur)
            import os
            XB = os.environ.get('XB', '')
            sm = softmax(cur)
            if 'E' in XB: sm = [x.replace('v_exp_f32', 'v_mov_b32') for x in sm]
            interleave(e, qk(nxt), ([] if 'R' in XB else rdV(buf, j)) + sm)
            kreads = rdK(nb, 0) if j == 0 else rdK(nb, 1)
            if 'R' in XB: kreads = []
            interleave(e, pv(), kreads[:3] + maxtree(nxt, MX, T0) + kreads[3:])
        if 'W' not in XB: e.i('s_waitcnt vmcnt(0)')
        e.settle()
        e.i('s_barrier')
        if tp == 1:
            lsk = e.newlabel('bsk')
            e.i('s_cmp_eq_u32 s56, 1')
            e.i(f's_cbranch_scc1 {lsk}')
            dmaK(nb)
            e.label(lsk)
        else:
            dmaK(nb)
        dmaV(buf)
    e.i('s_sub_u32 s56, s56, 1')
    e.i('s_cmp_lg_u32 s56, 0')
    e.settle()
    e.i(f's_cbranch_scc1 {loop}')
    e.label(ldiag)
    lend = e.newlabel('bdend')
    for j4 in range(4):
        buf, j = j4 >> 1, j4 & 1
        if j4 == 0:
            lskip = e.newlabel('bsk')
            e.i('s_cmp_lg_u32 s52, 0')
            e.i(f's_cbranch_scc1 {lskip}')
            dmaV(1)
            e.label(lskip)
        if j4 == 2:
            e.i('s_waitcnt vmcnt(0)')
            e.settle()
            e.i('s_barrier')
        lnext = e.newlabel('bdn')
        e.i(f's_cmp_lt_u32 s57, {j4}')
        e.settle()
        e.i(f's_cbranch_scc1 {lnext}')
        for x in rdK(buf, j):
            e.i(x)
        for x in qk(S0):
            e.i(x)
        for x in rdV(buf, j):
            e.i(x)
        lnm = e.newlabel('bnm')
        e.i(f's_cmp_lg_u32 s57, {j4}')
        e.settle()
        e.i(f's_cbranch_scc1 {lnm}')
        e.i('v_and_b32 v2, 31, v1')
        e.i('v_lshrrev_b32 v3, 5, v1')
        e.i('v_lshlrev_b32 v3, 2, v3')
        e.i('v_sub_u32 v2, v2, v3')
        e.i('v_mov_b32 v4, 0xff800000')
        for r in range(16):
            kk = 8 * (r >> 2) + (r & 3)
            e.i(f'v_cmp_gt_i32 vcc, {kk}, v2')
            e.i(f'v_cndmask_b32 v{S0+r}, v{S0+r}, v4, vcc')
        e.label(lnm)
        lfirst, lcont = e.newlabel('bf'), e.newlabel('bc')
        e.i('s_cmp_eq_u32 s70, 1')
        e.i(f's_cbranch_scc1 {lfirst}')
        for x in maxtree(S0, MX, T0):
            e.i(x)
        check(S0)
        e.i(f's_branch {lcont}')
        e.label(lfirst)
        rare_fix(e, S0, MN, O, 64, L, MX, T0, T1, True)
        e.i('s_mov_b32 s70, 0')
        e.label(lcont)
        for x in softmax(S0):
            e.i(x)
        for x in pv():
            e.i(x)
        e.label(lnext)
    e.settle()
    e.i(f'v_add_f32 v{L[0]}, v{L[0]}, v{L[1]}')
    e.i(f'v_add_f32 v{L[2]}, v{L[2]}, v{L[3]}')
    e.i(f'v_add_f32 v{L[0]}, v{L[0]}, v{L[2]}')
    e.i(f'v_mov_b32 v{T0}, v{L[0]}')
    e.i(f'v_mov_b32 v{T1}, v{L[0]}')
    e.i(f'v_permlane32_swap_b32 v{T0}, v{T1}')
    e.i(f'v_add_f32 v{T0}, v{T0}, v{T1}')
    e.i(f'v_rcp_f32 v{T0}, v{T0}')
    make_srd(e, 48, PTR['ws'], WS['CTX'], 16 * MB)
    e.i('v_and_b32 v2, 31, v1')
    e.i('s_lshl_b32 s60, s52, 7')
    e.i('s_lshl_b32 s61, s57, 5')
    e.i('s_add_u32 s60, s60, s61')
    e.i('v_add_u32 v2, s60, v2')
    e.i('v_lshlrev_b32 v2, 5, v2')
    e.i('v_lshrrev_b32 v3, 5, v1')
    e.i('v_lshl_add_u32 v2, v3, 3, v2')
    e.i('s_lshl_b32 s61, s53, 19')
    for blk in range(4):
        for g in range(4):
            a = O + 16 * blk + 4 * g
            t = 128 + 8 * ((blk * 4 + g) % 4)
            if g % 2 == 0:
                e.i(f's_add_u32 s60, s61, {(blk*2+(g>>1))*65536}')
            for i in range(4):
                e.i(f'v_mul_f32 v{t+2+i}, v{a+i}, v{T0}')
            e.i(f'v_cvt_pk_bf16_f32 v{t}, v{t+2}, v{t+3}')
            e.i(f'v_cvt_pk_bf16_f32 v{t+1}, v{t+4}, v{t+5}')
            e.i(f'buffer_store_dwordx2 v[{t}:{t+1}], v2, s[48:51], s60 offen offset:{16*(g&1)}')
    e.i('s_add_u32 s67, s67, 1')
    e.i('s_mov_b32 s52, s4')
    e.i('s_cmp_eq_u32 s67, 1')
    e.settle()
    e.i(f's_cbranch_scc1 {qloop}')
    e.i('s_endpgm')
    for lr, lb, S in rare_sites:
        e.label(lr)
        e._nop(16)
        rare_fix(e, S, MN, O, 64, L, MX, T0, T1, False)
        e.i(f's_branch {lb}')

def attn_a(e):
    KD, VD = 8, 12
    KR, VR = 16, 18
    Q, O, MN, SB, P, KF, VF = 32, 64, 96, 128, 192, 208, 224
    MX = [240, 241]
    T0, T1 = 242, 243
    rare_sites = []
    def Sreg(par, qt):
        return SB + 32 * par + 16 * qt
    e.i('s_and_b32 s53, s3, 31')
    e.i('s_lshr_b32 s52, s3, 5')
    make_srd(e, 40, PTR['ws'], WS['KA'], 4 * MB)
    make_srd(e, 44, PTR['ws'], WS['VA'], 4 * MB)
    e.i('v_and_b32 v1, 63, v0')
    e.i('v_lshrrev_b32 v2, 6, v0')
    e.i('v_readfirstlane_b32 s57, v2')
    e.i('v_lshrrev_b32 v2, 2, v1')
    e.i('v_bfe_u32 v3, v1, 4, 2')
    e.i('v_and_b32 v4, 3, v1')
    e.i('v_xor_b32 v4, v4, v3')
    e.i('s_lshl_b32 s60, s53, 11')
    e.i('s_lshl_b32 s61, s57, 5')
    e.i('s_add_u32 s60, s60, s61')
    e.i('v_add_u32 v2, s60, v2')
    e.i('v_lshlrev_b32 v2, 6, v2')
    e.i(f'v_lshl_add_u32 v{KD}, v4, 4, v2')
    e.i('v_lshrrev_b32 v2, 4, v1')
    e.i('v_and_b32 v3, 15, v1')
    e.i('s_lshl_b32 s61, s57, 3')
    e.i('s_lshl_b32 s60, s53, 5')
    e.i('s_add_u32 s60, s60, s61')
    for n in range(2):
        e.i(f'v_add_u32 v4, {4*n}, v2')
        e.i('v_add_u32 v5, s61, v4')
        e.i('v_and_b32 v5, 15, v5')
        e.i('v_xor_b32 v5, v5, v3')
        e.i('v_add_u32 v4, s60, v4')
        e.i('v_lshlrev_b32 v4, 12, v4')
        e.i('v_lshl_add_u32 v4, v5, 4, v4')
        e.i(f'v_subrev_u32 v{VD+n}, {1024*n}, v4')
    e.i('v_and_b32 v2, 31, v1')
    e.i('v_lshrrev_b32 v3, 5, v1')
    e.i('v_bfe_u32 v4, v1, 2, 2')
    e.i('v_xor_b32 v4, v4, v3')
    e.i('v_lshlrev_b32 v4, 4, v4')
    e.i(f'v_lshl_add_u32 v{KR}, v2, 6, v4')
    e.i(f'v_xor_b32 v{KR+1}, 32, v{KR}')
    e.i('v_and_b32 v4, 15, v1')
    e.i('v_xor_b32 v4, v4, v3')
    e.i('v_lshlrev_b32 v4, 4, v4')
    e.i(f'v_lshl_add_u32 v{VR}, v2, 8, v4')
    e.i(f'v_add_u32 v{VR}, 8192, v{VR}')
    for c in range(1, 8):
        e.i(f'v_xor_b32 v{VR+c}, {32*c}, v{VR}')
    e.i('s_lshl_b32 s62, s57, 11')

    def dmaK(buf):
        e.i(f's_add_u32 m0, s62, {buf*16384}')
        for n in range(2):
            e.i(f'buffer_load_dwordx4 v{KD}, s[40:43], s54 offen offset:{1024*n} lds')
        e.i('s_add_u32 s54, s54, 8192')
    def dmaV(buf):
        e.i(f's_add_u32 m0, s62, {buf*16384+8192}')
        for n in range(2):
            e.i(f'buffer_load_dwordx4 v{VD+n}, s[44:47], s55 offen offset:{1024*n} lds')
        e.i('s_add_u32 s55, s55, 256')
    def rdK(buf, j, par):
        return [f'ds_read_b128 v[{KF+8*par+4*t}:{KF+8*par+4*t+3}], v{KR+t} offset:{buf*16384+j*2048}' for t in range(2)]
    def rdV(buf, j, par):
        return [f'ds_read_b128 v[{VF+8*par+4*t}:{VF+8*par+4*t+3}], v{VR+2*j+t} offset:{buf*16384}' for t in range(2)]
    def qk(par):
        r = []
        for qt in range(2):
            S = Sreg(par, qt)
            for t in range(2):
                c = f'v[{MN+16*qt}:{MN+16*qt+15}]' if t == 0 else f'v[{S}:{S+15}]'
                f = KF + 8 * par + 4 * t
                r.append(f'v_mfma_f32_32x32x16_bf16 v[{S}:{S+15}], v[{f}:{f+3}], v[{Q+8*qt+4*t}:{Q+8*qt+4*t+3}], {c}')
        return r
    def pv(par):
        r = []
        for qt in range(2):
            for t in range(2):
                f = VF + 8 * par + 4 * t
                r.append(f'v_mfma_f32_32x32x16_bf16 v[{O+16*qt}:{O+16*qt+15}], v[{f}:{f+3}], v[{P+8*qt+4*t}:{P+8*qt+4*t+3}], v[{O+16*qt}:{O+16*qt+15}]')
        return r
    def softmax(par):
        r = []
        for qt in range(2):
            S = Sreg(par, qt)
            for p in range(8):
                a, b = S + 2 * p, S + 2 * p + 1
                r.append(f'v_exp_f32 v{a}, v{a}')
                r.append(f'v_exp_f32 v{b}, v{b}')
                if p >= 1:
                    r.append(f'v_cvt_pk_bf16_f32 v{P+8*qt+p-1}, v{a-2}, v{b-2}')
            r.append(f'v_cvt_pk_bf16_f32 v{P+8*qt+7}, v{S+14}, v{S+15}')
        return r
    def check(par):
        lr, lb = e.newlabel('arare'), e.newlabel('aback')
        e.i(f'v_max_f32 v{T1}, v{MX[0]}, v{MX[1]}')
        e.i(f'v_cmp_lt_f32 vcc, {THR}, v{T1}')
        e.i(f's_cbranch_vccnz {lr}')
        e.raw(f'{lb}:')
        rare_sites.append((lr, lb, par))

    e.i('s_mov_b32 s54, 0')
    e.i('s_mov_b32 s55, 0')
    dmaK(0); dmaV(0); dmaK(1)
    make_srd(e, 48, PTR['ws'], WS['QA'], 4 * MB)
    e.i('v_and_b32 v2, 31, v1')
    e.i('s_lshl_b32 s60, s53, 11')
    e.i('s_lshl_b32 s61, s52, 8')
    e.i('s_add_u32 s60, s60, s61')
    e.i('s_lshl_b32 s61, s57, 6')
    e.i('s_add_u32 s60, s60, s61')
    e.i('v_add_u32 v2, s60, v2')
    e.i('v_lshlrev_b32 v2, 6, v2')
    e.i('v_lshrrev_b32 v3, 5, v1')
    e.i('v_lshl_add_u32 v2, v3, 4, v2')
    for qt in range(2):
        for t in range(2):
            e.i(f'buffer_load_dwordx4 v[{Q+8*qt+4*t}:{Q+8*qt+4*t+3}], v2, s[48:51], 0 offen offset:{qt*2048+32*t}')
    for r in range(32):
        e.i(f'v_mov_b32 v{O+r}, 0')
        e.i(f'v_mov_b32 v{MN+r}, 0')
    e.i('s_waitcnt vmcnt(0)')
    e.i('s_barrier')
    for x in rdK(0, 0, 0):
        e.i(x)
    for x in qk(0):
        e.i(x)
    for qt in range(2):
        rare_fix(e, Sreg(0, qt), MN + 16 * qt, O + 16 * qt, 16, [], MX[qt], T0, T1, True)
        e.i(f'v_mov_b32 v{MX[qt]}, 0')
    for x in rdK(0, 1, 1):
        e.i(x)
    dmaV(1)
    e.i('s_mov_b32 s56, 8')
    loop = e.newlabel('al')
    e.label(loop)
    for tp in range(2):
        buf, nb = tp, 1 - tp
        for j in range(4):
            par = j & 1
            check(par)
            interleave(e, qk(1 - par), rdV(buf, j, par) + softmax(par))
            kre = rdK(buf, j + 2, par) if j < 2 else rdK(nb, j - 2, par)
            mt = maxtree(Sreg(1 - par, 0), MX[0], T0) + maxtree(Sreg(1 - par, 1), MX[1], T1)
            interleave(e, pv(par), kre + mt)
            if j == 1:
                e.i('s_waitcnt vmcnt(0)')
                e.settle()
                e.i('s_barrier')
                dmaK(buf)
        e.settle()
        e.i('s_barrier')
        dmaV(buf)
    e.i('s_sub_u32 s56, s56, 1')
    e.i('s_cmp_lg_u32 s56, 0')
    e.settle()
    e.i(f's_cbranch_scc1 {loop}')
    e.settle()
    make_srd(e, 48, PTR['ws'], WS['OA'], 40 * 65536)
    e.i('v_and_b32 v2, 31, v1')
    e.i('s_lshl_b32 s60, s52, 8')
    e.i('s_lshl_b32 s61, s57, 6')
    e.i('s_add_u32 s60, s60, s61')
    e.i('v_add_u32 v2, s60, v2')
    e.i('v_lshlrev_b32 v2, 5, v2')
    e.i('v_lshrrev_b32 v3, 5, v1')
    e.i('v_lshlrev_b32 v3, 2, v3')
    e.i('s_mul_i32 s60, s53, 20')
    e.i('v_add_u32 v3, s60, v3')
    for g in range(3):
        e.i(f'v_add_u32 v4, {8*g}, v3')
        e.i('v_lshrrev_b32 v5, 4, v4')
        e.i('v_and_b32 v4, 15, v4')
        e.i('v_lshlrev_b32 v5, 16, v5')
        e.i('v_lshl_add_u32 v5, v4, 1, v5')
        e.i(f'v_add_u32 v{160+g}, v5, v2')
    for qt in range(2):
        Oq = O + 16 * qt
        e.i(f'v_mov_b32 v{T0}, v{Oq+8}')
        e.i(f'v_mov_b32 v{T1}, v{Oq+8}')
        e.i(f'v_permlane32_swap_b32 v{T0}, v{T1}')
        e.i(f'v_rcp_f32 v{T1}, v{T1}')
        for g in range(3):
            t = 128 + 8 * g
            for i in range(4):
                e.i(f'v_mul_f32 v{t+2+i}, v{Oq+4*g+i}, v{T1}')
            e.i(f'v_cvt_pk_bf16_f32 v{t}, v{t+2}, v{t+3}')
            e.i(f'v_cvt_pk_bf16_f32 v{t+1}, v{t+4}, v{t+5}')
            if g == 2:
                e.i('v_cmp_gt_u32 vcc, 32, v1')
                e.i('s_and_saveexec_b64 s[68:69], vcc')
            e.i(f'buffer_store_dwordx2 v[{t}:{t+1}], v{160+g}, s[48:51], 0 offen offset:{1024*qt}')
            if g == 2:
                e.i('s_mov_b64 exec, s[68:69]')
    e.i('s_endpgm')
    for lr, lb, par in rare_sites:
        e.label(lr)
        e._nop(16)
        for qt in range(2):
            rare_fix(e, Sreg(par, qt), MN + 16 * qt, O + 16 * qt, 16, [], MX[qt], T0, T1, False)
        e.i(f's_branch {lb}')

def attn_kernel(e, name):
    e.raw(f'.globl {name}')
    e.raw('.p2align 8')
    e.raw(f'.type {name},@function')
    e.raw(f'{name}:')
    endl = e.newlabel('aend')
    la = e.newlabel('aja')
    e.i('s_cmp_ge_u32 s2, 512')
    e.i(f's_cbranch_scc1 {endl}')
    load_ptrs(e)
    make_srd(e, 40, PTR['B_wo'], 0, 4096 * 640 * 2)
    make_srd(e, 44, PTR['A_wo'], 0, 640 * 640 * 2)
    e.i('s_mul_i32 s60, s2, 10240')
    e.i('s_mul_i32 s61, s2, 1664')
    e.i('v_lshlrev_b32 v2, 7, v0')
    e.i('v_cmp_gt_u32 vcc, 80, v0')
    e.i('s_and_saveexec_b64 s[68:69], vcc')
    e.i('buffer_load_dword v255, v2, s[40:43], s60 offen')
    e.i('v_cmp_gt_u32 vcc, 13, v0')
    e.i('s_and_b64 exec, exec, vcc')
    e.i('buffer_load_dword v255, v2, s[44:47], s61 offen')
    e.i('s_mov_b64 exec, s[68:69]')
    e.i('s_cmp_ge_u32 s2, 256')
    e.i(f's_cbranch_scc1 {la}')
    import os
    if os.environ.get('XA') == 'A': e.i('s_endpgm')
    e.i('s_mov_b32 s3, s2')
    if os.environ.get('PRIO'): e.i('s_setprio ' + os.environ['PRIO'])
    attn_b(e)
    e.label(endl)
    e.i('s_endpgm')
    e.label(la)
    if os.environ.get('XA') == 'B': e.i('s_endpgm')
    e.i('s_sub_u32 s3, s2, 256')
    attn_a(e)
```

```python
from emit import Emitter
import math, os

MB = 1 << 20
WS = dict(QA=0, KA=4*MB, VA=8*MB, QB=12*MB, KB=28*MB, VB=44*MB, OA=60*MB, CTX=64*MB)
LOG2E = 1.4426950408889634
SC_A = (20 ** -0.5) * LOG2E
SC_B = (128 ** -0.5) * LOG2E
import struct
def f32bits(x):
    return struct.unpack('<I', struct.pack('<f', x))[0]

PTR = dict(A_x=16, A_wqkv=18, A_wo=20, B_x=22, B_c=24, B_wq=26, B_wuk=28, B_wuv=30, B_wo=32, out=34, dbg=36, ws=38)

def load_ptrs(e):
    e.i('s_load_dwordx16 s[16:31], s[0:1], 0')
    e.i('s_load_dwordx8 s[32:39], s[0:1], 64')
    e.i('s_waitcnt lgkmcnt(0)')

def make_srd(e, d, ptr, off, nbytes):
    if off:
        e.i(f's_add_u32 s{d}, s{ptr}, {off}')
        e.i(f's_addc_u32 s{d+1}, s{ptr+1}, 0')
    else:
        e.i(f's_mov_b32 s{d}, s{ptr}')
        e.i(f's_mov_b32 s{d+1}, s{ptr+1}')
    e.i(f's_and_b32 s{d+1}, s{d+1}, 0xffff')
    e.i(f's_mov_b32 s{d+2}, {nbytes}')
    e.i(f's_mov_b32 s{d+3}, 0x00020000')

class GemmCfg:
    def __init__(s, BM, BN, TM, TN):
        s.BM, s.BN, s.TM, s.TN = BM, BN, TM, TN
        s.RB = BN * 2
        s.SA = BM * 64
        s.SB = 32 * s.RB
        s.NS = 4
        s.nA = s.SA // 1024 // 8
        s.nB = s.SB // 1024 // 4
        s.lds = s.NS * (s.SA + 2 * s.SB)
        s.ACC = 64
        s.AF = s.ACC + 16 * TM * TN
        s.BF = s.AF + 2 * TM * 4
        s.nv = s.BF + 2 * TN * 4

def gemm_job(e, c, job):
    TM, TN = c.TM, c.TN
    lda2, ldb2 = job['lda'] * 2, job['ldb'] * 2
    nst = job['K'] // 32
    make_srd(e, 40, *job['X'])
    make_srd(e, 44, *job['W'])
    e.i('v_and_b32 v1, 63, v0')
    e.i('s_and_b32 s70, s57, 3')
    e.i('s_lshr_b32 s58, s70, 1')
    e.i('s_and_b32 s59, s70, 1')
    e.i(f's_mul_i32 s72, s71, {c.NS*c.SB}')
    e.i(f's_add_u32 s72, s72, {c.NS*c.SA}')
    e.i('v_lshrrev_b32 v2, 2, v1')
    e.i('v_bfe_u32 v3, v1, 4, 2')
    e.i('v_and_b32 v4, 3, v1')
    e.i('v_xor_b32 v4, v4, v3')
    e.i(f's_mul_i32 s60, s57, {16*c.nA}')
    e.i('s_add_u32 s60, s60, s52')
    e.i('v_add_u32 v2, s60, v2')
    e.i(f's_mov_b32 s61, {lda2}')
    e.i('v_mul_lo_u32 v2, v2, s61')
    e.i('v_lshl_add_u32 v2, v4, 4, v2')
    for n in range(c.nA):
        e.i(f'v_add_u32 v{8+n}, {n*(16*lda2-1024)}, v2')
    sh = int(math.log2(c.RB // 16))
    rp = 1024 // c.RB
    e.i(f'v_lshrrev_b32 v2, {sh}, v1')
    e.i(f'v_and_b32 v3, {c.RB//16-1}, v1')
    e.i('v_lshrrev_b32 v4, 2, v3')
    if c.RB == 256:
        e.i('v_bfe_u32 v5, v1, 4, 2')
    else:
        e.i('v_bfe_u32 v5, v1, 4, 1')
    e.i('v_xor_b32 v4, v4, v5')
    e.i('v_and_b32 v3, 3, v3')
    e.i('v_lshlrev_b32 v3, 4, v3')
    e.i('v_lshl_add_u32 v3, v4, 6, v3')
    e.i(f's_mul_i32 s60, s70, {rp*c.nB}')
    e.i('v_add_u32 v2, s60, v2')
    e.i(f's_mov_b32 s61, {ldb2}')
    e.i('v_mul_lo_u32 v2, v2, s61')
    e.i('v_add_u32 v2, v2, v3')
    e.i('s_lshl_b32 s60, s53, 1')
    e.i('v_add_u32 v2, s60, v2')
    for n in range(c.nB):
        e.i(f'v_add_u32 v{12+n}, {n*(rp*ldb2-1024)}, v2')
    e.i('v_and_b32 v2, 31, v1')
    e.i('v_lshrrev_b32 v3, 5, v1')
    e.i('v_bfe_u32 v4, v1, 2, 2')
    e.i('v_xor_b32 v4, v4, v3')
    e.i(f's_mul_i32 s60, s58, {TM*32}')
    e.i('v_add_u32 v2, s60, v2')
    e.i('v_lshlrev_b32 v2, 6, v2')
    e.i('v_lshl_add_u32 v16, v4, 4, v2')
    e.i('v_xor_b32 v17, 32, v16')
    e.i('v_bfe_u32 v2, v1, 2, 2')
    e.i('v_lshrrev_b32 v3, 5, v1')
    e.i('v_lshl_add_u32 v3, v3, 3, v2')
    e.i(f'v_mul_u32_u24 v3, {c.RB}, v3')
    if c.RB == 256:
        e.i('v_mov_b32 v4, v2')
    else:
        e.i('v_lshrrev_b32 v4, 1, v2')
    e.i(f's_mul_i32 s60, s59, {TN}')
    e.i('v_xor_b32 v4, s60, v4')
    e.i('v_lshl_add_u32 v3, v4, 6, v3')
    e.i('v_bfe_u32 v4, v1, 4, 1')
    e.i('v_and_b32 v5, 3, v1')
    e.i('v_lshlrev_b32 v5, 3, v5')
    e.i('v_lshl_add_u32 v5, v4, 5, v5')
    e.i('v_add_u32 v3, v3, v5')
    e.i('v_add_u32 v18, s72, v3')
    for tn in range(1, TN):
        e.i(f'v_xor_b32 v{18+tn}, {tn<<6}, v18')
    e.i(f's_mul_i32 s62, s57, {c.nA*1024}')
    e.i(f's_mul_i32 s63, s70, {c.nB*1024}')
    e.i('s_add_u32 s63, s63, s72')
    e.i('s_mov_b32 s54, 0')
    e.i('s_mov_b32 s55, 0')
    for r in range(16 * TM * TN):
        e.i(f'v_mov_b32 v{c.ACC+r}, 0')

    import os
    X = os.environ.get('XP', '')
    def dma(buf):
        if 'D' in X: return
        e.i(f's_add_u32 m0, s62, {buf*c.SA}')
        for n in range(c.nA):
            e.i(f'buffer_load_dwordx4 v{8+n}, s[40:43], s54 offen offset:{1024*n} lds')
        e.i(f's_add_u32 m0, s63, {buf*c.SB}')
        for n in range(c.nB):
            e.i(f'buffer_load_dwordx4 v{12+n}, s[44:47], s55 offen offset:{1024*n} lds')
        e.i('s_add_u32 s54, s54, 64')
        e.i(f's_add_u32 s55, s55, {32*ldb2}')

    nd = c.nA + c.nB
    for b in range(c.NS - 1):
        dma(b)
    import os
    if os.environ.get('SHORTK'): nst = 4
    e.i(f's_mov_b32 s56, {nst}')
    loop = e.newlabel('gl')
    done = e.newlabel('gd')
    def rdA(b, t, tm):
        if 'R' in X: return
        f = c.AF + (t * TM + tm) * 4
        e.i(f'ds_read_b128 v[{f}:{f+3}], v{16+t} offset:{b*c.SA + tm*2048}')
    def rdB(b, t, tn):
        if 'R' in X: return
        f = c.BF + (t * TN + tn) * 4
        for hh in range(2):
            e.i(f'ds_read_b64_tr_b16 v[{f+2*hh}:{f+2*hh+1}], v{18+tn} offset:{b*c.SB + (16*t+4*hh)*c.RB}')
    def reads():
        seq = []
        for x in range(max(TM, TN)):
            if x < TN: seq.append(('B', x))
            if x < TM: seq.append(('A', x))
        return seq
    def do(rd, b, t):
        (rdA if rd[0] == 'A' else rdB)(b, t, rd[1])
    def mfma(t, rb, rt):
        r1 = reads()
        for tm in range(TM):
            for tn in range(TN):
                a = c.AF + (t * TM + tm) * 4
                bb = c.BF + (t * TN + tn) * 4
                d = c.ACC + 16 * (tm * TN + tn)
                if job['mode'] == 'ROW':
                    e.i(f'v_mfma_f32_32x32x16_bf16 v[{d}:{d+15}], v[{bb}:{bb+3}], v[{a}:{a+3}], v[{d}:{d+15}]')
                else:
                    e.i(f'v_mfma_f32_32x32x16_bf16 v[{d}:{d+15}], v[{a}:{a+3}], v[{bb}:{bb+3}], v[{d}:{d+15}]')
                if r1:
                    do(r1.pop(0), rb, rt)
    e.i(f's_waitcnt vmcnt({nd*(c.NS-2)})')
    e.i('s_barrier')
    for rd in reads():
        do(rd, 0, 0)
    e.label(loop)
    for b in range(c.NS):
        mfma(0, b, 1)
        e.i(f's_waitcnt vmcnt({nd*(c.NS-3)})')
        e.i('s_barrier')
        e.i(f's_cmp_le_u32 s56, {c.NS-1}')
        e.i('s_cselect_b32 s42, 0, s42')
        e.i('s_cselect_b32 s46, 0, s46')
        dma((b + c.NS - 1) % c.NS)
        mfma(1, (b + 1) % c.NS, 0)
        e.i('s_sub_u32 s56, s56, 1')
        if nst % c.NS or b == c.NS - 1:
            e.i('s_cmp_eq_u32 s56, 0')
            e.settle()
            e.i(f's_cbranch_scc1 {done}')
    e.i(f's_branch {loop}')
    e.label(done)
    e.i('s_waitcnt vmcnt(0) lgkmcnt(0)')
    import os
    if not os.environ.get('NOEPI'):
        job['epi'](e, c, job)
    e.i('s_endpgm')

def cvt_store(e, c, acc, scale_s, voff, soff, imm, tmp):
    src = [acc + i for i in range(4)]
    if scale_s is not None:
        for i in range(4):
            e.i(f'v_mul_f32 v{tmp+2+i}, {scale_s}, v{acc+i}')
        src = [tmp + 2 + i for i in range(4)]
    e.i(f'v_cvt_pk_bf16_f32 v{tmp}, v{src[0]}, v{src[1]}')
    e.i(f'v_cvt_pk_bf16_f32 v{tmp+1}, v{src[2]}, v{src[3]}')
    e.i(f'buffer_store_dwordx2 v[{tmp}:{tmp+1}], v{voff}, s[48:51], {soff} offen offset:{imm}')

def epi_row_plain(e, c, job):
    TM, TN = c.TM, c.TN
    pitch = job['pitch']
    make_srd(e, 48, *job['O'])
    job['base'](e)
    e.i('v_and_b32 v2, 31, v1')
    e.i(f's_mul_i32 s60, s58, {TM*32}')
    e.i('s_add_u32 s60, s60, s52')
    e.i('v_add_u32 v2, s60, v2')
    e.i(f's_mov_b32 s61, {pitch}')
    e.i('v_mul_lo_u32 v2, v2, s61')
    e.i('v_lshrrev_b32 v3, 5, v1')
    e.i('v_lshlrev_b32 v3, 3, v3')
    e.i(f's_mul_i32 s60, s59, {TN*64}')
    e.i('s_add_u32 s60, s60, s64')
    e.i('v_add3_u32 v2, v2, v3, s60')
    sc = None
    if job.get('scale'):
        e.i(f's_mov_b32 s65, {f32bits(job["scale"])}')
        sc = 's65'
    k = 0
    for tm in range(TM):
        e.i(f's_mov_b32 s66, {tm*32*pitch}')
        for tn in range(TN):
            for g in range(4):
                acc = c.ACC + 16 * (tm * TN + tn) + 4 * g
                cvt_store(e, c, acc, sc, 2, 's66', tn * 64 + 16 * g, 24 + 8 * (k % 4))
                k += 1

def epi_row_a(e, c, job):
    TM, TN = c.TM, c.TN
    e.i('s_barrier')
    make_srd(e, 48, *job['O'])
    e.i('v_and_b32 v2, 31, v1')
    e.i(f's_mul_i32 s60, s58, {TM*32}')
    e.i('s_add_u32 s60, s60, s52')
    e.i('v_add_u32 v2, s60, v2')
    e.i('v_lshlrev_b32 v2, 6, v2')
    e.i('v_lshrrev_b32 v3, 5, v1')
    e.i('v_lshlrev_b32 v3, 2, v3')
    e.i(f's_mul_i32 s60, s59, {TN*32}')
    e.i('s_add_u32 s60, s60, s53')
    e.i('v_add_u32 v3, s60, v3')
    sc = None
    if job.get('scale'):
        e.i(f's_mov_b32 s65, {f32bits(job["scale"])}')
        sc = 's65'
    e.i('v_mov_b32 v20, 0')
    e.i('v_mov_b32 v21, 0')
    e.i('v_mov_b32 v22, 0')
    e.i('v_mov_b32 v23, 0')
    k = 0
    for tn in range(TN):
        for g in range(4):
            e.i(f'v_add_u32 v4, {tn*32+8*g}, v3')
            e.i('v_mul_u32_u24 v5, 0xcccd, v4')
            e.i('v_lshrrev_b32 v5, 20, v5')
            e.i('v_mul_u32_u24 v6, 20, v5')
            e.i('v_sub_u32 v6, v4, v6')
            e.i('v_lshlrev_b32 v5, 17, v5')
            e.i('v_lshl_add_u32 v5, v6, 1, v5')
            e.i('v_add_u32 v5, v5, v2')
            for tm in range(TM):
                e.i(f's_mov_b32 s66, {tm*32*64}')
                acc = c.ACC + 16 * (tm * TN + tn) + 4 * g
                cvt_store(e, c, acc, sc, 5, 's66', 0, 24 + 8 * (k % 4))
                k += 1
            e.i('v_cmp_eq_u32 vcc, 16, v6')
            e.i('s_and_saveexec_b64 s[68:69], vcc')
            for tm in range(TM):
                e.i(f's_mov_b32 s66, {tm*32*64}')
                e.i('buffer_store_dwordx2 v[20:21], v5, s[48:51], s66 offen offset:8')
                e.i('buffer_store_dwordx4 v[20:23], v5, s[48:51], s66 offen offset:16')
            e.i('s_mov_b64 exec, s[68:69]')

def epi_col(e, c, job):
    TM, TN = c.TM, c.TN
    make_srd(e, 48, *job['O'])
    e.i('v_lshrrev_b32 v3, 5, v1')
    e.i('v_lshlrev_b32 v3, 3, v3')
    e.i(f's_mul_i32 s60, s58, {TM*32}')
    e.i('s_add_u32 s60, s60, s52')
    e.i('v_add_u32 v3, s60, v3')
    e.i('v_lshlrev_b32 v3, 1, v3')
    e.i('v_and_b32 v2, 31, v1')
    e.i(f's_mul_i32 s60, s59, {TN*32}')
    e.i('s_add_u32 s60, s60, s53')
    e.i('v_add_u32 v2, s60, v2')
    e.i('v_mov_b32 v20, 0x3f803f80')
    e.i('v_mov_b32 v21, 0x3f803f80')
    k = 0
    for tn in range(TN):
        e.i(f'v_add_u32 v4, {tn*32 - job.get("noff", 0)}, v2')
        if job.get('apart'):
            e.i('v_mul_u32_u24 v5, 0xcccd, v4')
            e.i('v_lshrrev_b32 v5, 20, v5')
            e.i('v_mul_u32_u24 v6, 20, v5')
            e.i('v_sub_u32 v6, v4, v6')
            e.i('v_lshl_add_u32 v4, v5, 5, v6')
        e.i('v_lshl_add_u32 v5, v4, 12, v3')
        for tm in range(TM):
            for g in range(4):
                acc = c.ACC + 16 * (tm * TN + tn) + 4 * g
                cvt_store(e, c, acc, None, 5, '0', tm * 64 + 32 * (g >> 1) + 8 * (g & 1), 24 + 8 * (k % 4))
                k += 1
        if job.get('apart'):
            e.i('v_cmp_eq_u32 vcc, 0, v6')
            e.i('s_and_saveexec_b64 s[68:69], vcc')
            e.i(f's_mov_b32 s66, {20*4096}')
            for tm in range(TM):
                for g in range(4):
                    e.i(f'buffer_store_dwordx2 v[20:21], v5, s[48:51], s66 offen offset:{tm*64+32*(g>>1)+8*(g&1)}')
            e.i('s_mov_b64 exec, s[68:69]')

def cvt_pack(e, acc, scale_s, tmp):
    src = [acc + i for i in range(4)]
    if scale_s is not None:
        for i in range(4):
            e.i(f'v_mul_f32 v{tmp+2+i}, {scale_s}, v{acc+i}')
        src = [tmp + 2 + i for i in range(4)]
    e.i(f'v_cvt_pk_bf16_f32 v{tmp}, v{src[0]}, v{src[1]}')
    e.i(f'v_cvt_pk_bf16_f32 v{tmp+1}, v{src[2]}, v{src[3]}')

def epi_row2(e, c, job):
    TM, TN = c.TM, c.TN
    assert TN == 2
    pitch = job['pitch']
    make_srd(e, 48, *job['O'])
    job['base'](e)
    e.i('s_barrier')
    e.i(f's_mul_i32 s60, s57, {TM*4096}')
    e.i('v_and_b32 v2, 31, v1')
    e.i('v_lshlrev_b32 v2, 7, v2')
    e.i('v_lshrrev_b32 v3, 5, v1')
    e.i('v_lshl_add_u32 v2, v3, 3, v2')
    e.i('v_add_u32 v2, s60, v2')
    e.i('v_bfe_u32 v3, v1, 1, 3')
    for ch in range(8):
        e.i(f'v_xor_b32 v4, {ch}, v3')
        e.i(f'v_lshl_add_u32 v{8+ch}, v4, 4, v2')
    sc = None
    if job.get('scale'):
        e.i(f's_mov_b32 s65, {f32bits(job["scale"])}')
        sc = 's65'
    k = 0
    for tm in range(TM):
        for tn in range(TN):
            for g in range(4):
                acc = c.ACC + 16 * (tm * TN + tn) + 4 * g
                tmp = 24 + 8 * (k % 4)
                cvt_pack(e, acc, sc, tmp)
                e.i(f'ds_write_b64 v{8+tn*4+g}, v[{tmp}:{tmp+1}] offset:{tm*4096}')
                k += 1
        e.i('s_waitcnt lgkmcnt(0)')
    e.i('v_lshrrev_b32 v2, 3, v1')
    e.i('v_and_b32 v3, 7, v1')
    e.i('v_lshrrev_b32 v4, 4, v1')
    e.i('v_xor_b32 v4, v4, v3')
    e.i('v_lshlrev_b32 v5, 7, v2')
    e.i('v_lshl_add_u32 v5, v4, 4, v5')
    e.i('v_add_u32 v5, s60, v5')
    e.i('v_xor_b32 v6, 64, v5')
    e.i(f's_mul_i32 s60, s58, {TM*32}')
    e.i('s_add_u32 s60, s60, s52')
    e.i('v_add_u32 v2, s60, v2')
    e.i(f's_mov_b32 s61, {pitch}')
    e.i('v_mul_lo_u32 v2, v2, s61')
    e.i('v_lshlrev_b32 v3, 4, v3')
    e.i(f's_mul_i32 s60, s59, {TN*64}')
    e.i('s_add_u32 s60, s60, s64')
    e.i('v_add3_u32 v2, v2, v3, s60')
    n = TM * 4
    D = 8
    def rd(i):
        f = c.AF + 4 * (i % D)
        e.i(f'ds_read_b128 v[{f}:{f+3}], v{5+(i&1)} offset:{i*1024}')
    for i in range(min(D - 1, n)):
        rd(i)
    for i in range(n):
        if i + D - 1 < n:
            rd(i + D - 1)
        f = c.AF + 4 * (i % D)
        e.i(f's_mov_b32 s66, {i*8*pitch}')
        e.i(f'buffer_store_dwordx4 v[{f}:{f+3}], v2, s[48:51], s66 offen')

def epi_col2(e, c, job):
    TM, TN = c.TM, c.TN
    assert TM == 4
    make_srd(e, 48, *job['O'])
    e.i('s_barrier')
    e.i(f's_mul_i32 s60, s57, {TN*8192}')
    e.i('v_and_b32 v2, 31, v1')
    e.i('v_lshlrev_b32 v2, 8, v2')
    e.i('v_add_u32 v2, s60, v2')
    e.i('v_and_b32 v3, 15, v1')
    e.i('v_lshrrev_b32 v4, 5, v1')
    e.i('v_xor_b32 v3, v3, v4')
    for ch in range(8):
        e.i(f'v_xor_b32 v4, {2*ch}, v3')
        e.i(f'v_lshl_add_u32 v{8+ch}, v4, 4, v2')
    k = 0
    for tn in range(TN):
        for tm in range(TM):
            for g in range(4):
                acc = c.ACC + 16 * (tm * TN + tn) + 4 * g
                tmp = 24 + 8 * (k % 4)
                cvt_pack(e, acc, None, tmp)
                e.i(f'ds_write_b64 v{8+tm*2+(g>>1)}, v[{tmp}:{tmp+1}] offset:{tn*8192+8*(g&1)}')
                k += 1
            e.i('s_waitcnt lgkmcnt(0)')
    e.i('v_lshrrev_b32 v2, 4, v1')
    e.i('v_and_b32 v3, 15, v1')
    e.i('v_lshlrev_b32 v5, 8, v2')
    e.i('v_add_u32 v5, s60, v5')
    for q in range(4):
        e.i(f'v_add_u32 v4, {4*q}, v2')
        e.i('v_xor_b32 v4, v4, v3')
        e.i(f'v_lshl_add_u32 v{8+q}, v4, 4, v5')
    e.i(f's_mul_i32 s60, s58, {TM*32}')
    e.i('s_add_u32 s60, s60, s52')
    e.i('s_lshl_b32 s60, s60, 1')
    e.i('v_lshl_add_u32 v3, v3, 4, s60')
    e.i(f's_mul_i32 s60, s59, {TN*32}')
    e.i('s_add_u32 s60, s60, s53')
    e.i(f's_sub_u32 s60, s60, {job.get("noff", 0)}')
    e.i('v_add_u32 v2, s60, v2')
    e.i('v_mov_b32 v20, 0x3f803f80')
    e.i('v_mov_b32 v21, 0x3f803f80')
    e.i('v_mov_b32 v22, 0x3f803f80')
    e.i('v_mov_b32 v23, 0x3f803f80')
    e.i(f's_mov_b32 s66, {20*4096}')
    n = TN * 8
    D = 8
    def rd(i):
        f = c.AF + 4 * (i % D)
        e.i(f'ds_read_b128 v[{f}:{f+3}], v{8+(i&3)} offset:{i*1024}')
    for i in range(min(D - 1, n)):
        rd(i)
    for i in range(n):
        if i + D - 1 < n:
            rd(i + D - 1)
        f = c.AF + 4 * (i % D)
        a = 12 + (i & 3)
        e.i(f'v_add_u32 v4, {4*i}, v2')
        if job.get('apart'):
            e.i('v_mul_u32_u24 v5, 0xcccd, v4')
            e.i('v_lshrrev_b32 v5, 20, v5')
            e.i('v_mul_u32_u24 v6, 20, v5')
            e.i('v_sub_u32 v6, v4, v6')
            e.i('v_lshl_add_u32 v4, v5, 5, v6')
        e.i(f'v_lshl_add_u32 v{a}, v4, 12, v3')
        e.i(f'buffer_store_dwordx4 v[{f}:{f+3}], v{a}, s[48:51], 0 offen')
        if job.get('apart'):
            e.i('v_cmp_eq_u32 vcc, 0, v6')
            e.i('s_and_saveexec_b64 s[68:69], vcc')
            e.i(f'buffer_store_dwordx4 v[20:23], v{a}, s[48:51], s66 offen')
            e.i('s_mov_b64 exec, s[68:69]')

def proj_kernel(e, name, c, jobs):
    e.raw(f'.globl {name}')
    e.raw('.p2align 8')
    e.raw(f'.type {name},@function')
    e.raw(f'{name}:')
    total = 448
    endl = e.newlabel('gend')
    e.i(f's_cmp_ge_u32 s2, {total}')
    e.i(f's_cbranch_scc1 {endl}')
    load_ptrs(e)
    e.i('v_lshrrev_b32 v2, 6, v0')
    e.i('v_readfirstlane_b32 s57, v2')
    e.i('s_lshr_b32 s71, s57, 2')
    lw = e.newlabel('warm')
    e.i('s_cmp_ge_u32 s2, 256')
    e.i(f's_cbranch_scc1 {lw}')
    e.i('v_lshlrev_b32 v2, 7, v0')
    e.i('s_mov_b64 s[68:69], exec')
    for nm, nb in (('B_x', 2621440), ('B_wq', 5242880), ('A_x', 2621440), ('A_wqkv', 2457600), ('B_c', 2097152), ('B_wuk', 4194304), ('B_wuv', 4194304)):
        make_srd(e, 40, PTR[nm], 0, nb)
        e.i(f's_mul_i32 s60, s2, {nb//256}')
        e.i(f'v_cmp_gt_u32 vcc, {nb//256//128}, v0')
        e.i('s_and_b64 exec, s[68:69], vcc')
        e.i('buffer_load_dword v60, v2, s[40:43], s60 offen')
        e.i('s_mov_b64 exec, s[68:69]')
    e.i('s_waitcnt vmcnt(0)') if os.environ.get('WARMWAIT') else None
    e.label(lw)
    L = {j['name']: e.newlabel('job') for j in jobs}
    la = e.newlabel('ja')
    e.i('s_sub_u32 s3, s2, 128')
    e.i('s_cmp_lt_u32 s3, 64')
    e.i(f's_cbranch_scc1 {la}')
    e.i('s_cmp_ge_u32 s2, 192')
    e.i('s_cselect_b32 s3, 64, 0')
    e.i('s_sub_u32 s3, s2, s3')
    e.i('s_lshr_b32 s6, s3, 7')
    e.i('s_and_b32 s3, s3, 127')
    e.i('s_and_b32 s4, s3, 7')
    e.i('s_bfe_u32 s5, s3, 0x30003')
    e.i('s_lshr_b32 s3, s3, 6')
    e.i('s_lshl_b32 s3, s3, 3')
    e.i('s_add_u32 s4, s4, s3')
    e.i('s_lshl_b32 s4, s4, 1')
    e.i('s_add_u32 s4, s4, s71')
    e.i(f's_mul_i32 s52, s5, {c.BM}')
    e.i(f's_mul_i32 s53, s4, {c.BN}')
    e.i('s_cmp_eq_u32 s6, 0')
    e.i(f's_cbranch_scc1 {L["BQ"]}')
    e.i('s_cmp_eq_u32 s6, 1')
    e.i(f's_cbranch_scc1 {L["BK"]}')
    e.i(f's_branch {L["BV"]}')
    e.label(la)
    e.i('s_and_b32 s5, s3, 7')
    e.i('s_lshr_b32 s4, s3, 3')
    e.i('s_lshl_b32 s4, s4, 1')
    e.i('s_add_u32 s4, s4, s71')
    e.i('s_min_u32 s4, s4, 14')
    e.i(f's_mul_i32 s52, s5, {c.BM}')
    e.i(f's_mul_i32 s53, s4, {c.BN}')
    e.i('s_cmp_lt_u32 s4, 5')
    e.i(f's_cbranch_scc1 {L["AQ"]}')
    e.i('s_cmp_lt_u32 s4, 10')
    e.i(f's_cbranch_scc1 {L["AK"]}')
    e.i(f's_branch {L["AV"]}')
    e.label(endl)
    e.i('s_endpgm')
    for j in jobs:
        e.label(L[j['name']])
        gemm_job(e, c, j)
    return total

def proj_jobs():
    S = 2048
    jobs = []
    def base_head(e):
        e.i('s_lshl_b32 s64, s53, 12')
    jobs.append(dict(name='BQ', X=(PTR['B_x'], 0, S*640*2), lda=640, W=(PTR['B_wq'], 0, 640*4096*2), ldb=4096, K=640,
                     mode='ROW', epi=epi_row2, pitch=256, base=base_head, O=(PTR['ws'], WS['QB'], 16*MB), scale=SC_B, mt=8, nt=32, xcd=True))
    jobs.append(dict(name='BK', X=(PTR['B_c'], 0, S*512*2), lda=512, W=(PTR['B_wuk'], 0, 512*4096*2), ldb=4096, K=512,
                     mode='ROW', epi=epi_row2, pitch=256, base=base_head, O=(PTR['ws'], WS['KB'], 16*MB), mt=8, nt=32, xcd=True))
    jobs.append(dict(name='BV', X=(PTR['B_c'], 0, S*512*2), lda=512, W=(PTR['B_wuv'], 0, 512*4096*2), ldb=4096, K=512,
                     mode='COL', epi=epi_col2, O=(PTR['ws'], WS['VB'], 16*MB), mt=8, nt=32, xcd=True))
    jobs.append(dict(name='AQ', X=(PTR['A_x'], 0, S*640*2), lda=640, W=(PTR['A_wqkv'], 0, 640*1920*2), ldb=1920, K=640,
                     mode='ROW', epi=epi_row_a, O=(PTR['ws'], WS['QA'], 8*MB), scale=SC_A, mt=8, nt=5))
    jobs.append(dict(name='AK', X=(PTR['A_x'], 0, S*640*2), lda=640, W=(PTR['A_wqkv'], 0, 640*1920*2), ldb=1920, K=640,
                     mode='ROW', epi=epi_row_a, O=(PTR['ws'], WS['QA'], 8*MB), mt=8, nt=5, nbase=640))
    jobs.append(dict(name='AV', X=(PTR['A_x'], 0, S*640*2), lda=640, W=(PTR['A_wqkv'], 0, 640*1920*2), ldb=1920, K=640,
                     mode='COL', epi=epi_col2, O=(PTR['ws'], WS['VA'], 4*MB), apart=True, noff=1280, mt=8, nt=5, nbase=1280))
    return jobs

def out_jobs():
    S = 2048
    jobs = []
    def base_b(e):
        e.i('s_lshl_b32 s64, s53, 1')
        e.i('s_add_u32 s64, s64, 1280')
    def base_a(e):
        e.i('s_lshl_b32 s64, s53, 1')
    jobs.append(dict(name='OB', X=(PTR['ws'], WS['CTX'], 16*MB), lda=4096, W=(PTR['B_wo'], 0, 4096*640*2), ldb=640, K=4096,
                     mode='ROW', epi=epi_row_plain, pitch=2560, base=base_b, O=(PTR['out'], 0, S*1280*2), mt=16, nt=10))
    jobs.append(dict(name='OA', X=(PTR['ws'], WS['OA'], S*640*2), lda=640, W=(PTR['A_wo'], 0, 640*640*2), ldb=640, K=640,
                     mode='ROW', epi=epi_row_plain, pitch=2560, base=base_a, O=(PTR['out'], 0, S*1280*2), mt=16, nt=10))
    return jobs
```

```python
from gemm import *

def out_job(e, job):
    ldb2 = job['ldb'] * 2
    nst = job['K'] // 4 // 32
    A0, BF, T = 32, 160, 176
    make_srd(e, 40, *job['X'])
    make_srd(e, 44, *job['W'])
    e.i('v_and_b32 v1, 63, v0')
    e.i('v_lshrrev_b32 v2, 6, v0')
    e.i('v_readfirstlane_b32 s57, v2')
    e.i('v_and_b32 v2, 31, v1')
    e.i('v_add_u32 v2, s52, v2')
    e.i('v_lshlrev_b32 v2, 5, v2')
    e.i('v_lshrrev_b32 v3, 5, v1')
    e.i('v_lshl_add_u32 v8, v3, 4, v2')
    e.i('v_lshrrev_b32 v2, 3, v1')
    e.i('v_and_b32 v3, 7, v1')
    e.i('v_lshrrev_b32 v4, 2, v3')
    e.i('v_bfe_u32 v5, v1, 4, 1')
    e.i('v_xor_b32 v4, v4, v5')
    e.i('v_and_b32 v3, 3, v3')
    e.i('v_lshlrev_b32 v3, 4, v3')
    e.i('v_lshl_add_u32 v3, v4, 6, v3')
    e.i(f's_mov_b32 s61, {ldb2}')
    e.i('v_mul_lo_u32 v2, v2, s61')
    e.i('v_add_u32 v2, v2, v3')
    e.i('s_lshl_b32 s60, s53, 1')
    e.i('v_add_u32 v2, s60, v2')
    for n in range(4):
        e.i(f'v_add_u32 v{12+n}, {n*(8*ldb2-1024)}, v2')
    e.i('s_lshl_b32 s63, s57, 15')
    e.i('v_bfe_u32 v2, v1, 2, 2')
    e.i('v_lshrrev_b32 v3, 5, v1')
    e.i('v_lshl_add_u32 v3, v3, 3, v2')
    e.i('v_mul_u32_u24 v3, 128, v3')
    e.i('v_lshrrev_b32 v4, 1, v2')
    e.i('v_lshl_add_u32 v3, v4, 6, v3')
    e.i('v_bfe_u32 v4, v1, 4, 1')
    e.i('v_and_b32 v5, 3, v1')
    e.i('v_lshlrev_b32 v5, 3, v5')
    e.i('v_lshl_add_u32 v5, v4, 5, v5')
    e.i('v_add_u32 v3, v3, v5')
    e.i('v_add_u32 v18, s63, v3')
    e.i('v_xor_b32 v19, 64, v18')
    e.i(f's_mul_i32 s54, s57, {nst*2*65536}')
    e.i('s_add_u32 s55, s54, 65536')
    e.i(f's_mul_i32 s58, s57, {nst*32*ldb2}')
    for r in range(128):
        e.i(f'v_accvgpr_write_b32 a{r}, 0')

    def loads(q):
        e.i(f's_add_u32 m0, s63, {q*4096}')
        import os
        XO = os.environ.get('XO', '')
        for n in range(4):
            if 'B' in XO: continue
            e.i(f'buffer_load_dwordx4 v{12+n}, s[44:47], s58 offen offset:{1024*n} lds')
        for t in range(2):
            for tm in range(4):
                if 'A' in XO: continue
                f = A0 + q * 32 + (t * 4 + tm) * 4
                e.i(f'buffer_load_dwordx4 v[{f}:{f+3}], v8, s[40:43], s{54+t} offen offset:{1024*tm}')
        e.i('s_add_u32 s54, s54, 131072')
        e.i('s_add_u32 s55, s55, 131072')
        e.i(f's_add_u32 s58, s58, {32*ldb2}')
    def trr(q, t):
        out = []
        for tn in range(2):
            f = BF + (t * 2 + tn) * 4
            for hh in range(2):
                out.append(f'ds_read_b64_tr_b16 v[{f+2*hh}:{f+2*hh+1}], v{18+tn} offset:{q*4096 + (16*t+4*hh)*128}')
        return out
    def mf(q, t, extra):
        extra = list(extra)
        for tm in range(4):
            for tn in range(2):
                a = A0 + q * 32 + (t * 4 + tm) * 4
                b = BF + (t * 2 + tn) * 4
                d = 16 * (tm * 2 + tn)
                e.i(f'v_mfma_f32_32x32x16_bf16 a[{d}:{d+15}], v[{b}:{b+3}], v[{a}:{a+3}], a[{d}:{d+15}]')
                if extra:
                    e.i(extra.pop(0))
    for q in range(3):
        loads(q)
    e.i(f's_mov_b32 s56, {nst}')
    e.i('s_waitcnt vmcnt(24)')
    for x in trr(0, 0):
        e.i(x)
    loop = e.newlabel('ol')
    done = e.newlabel('od')
    e.label(loop)
    for q in range(4):
        e.i('s_cmp_le_u32 s56, 3')
        e.i('s_cselect_b32 s42, 0, s42')
        e.i('s_cselect_b32 s46, 0, s46')
        loads((q + 3) % 4)
        mf(q, 0, trr(q, 1))
        e.i('s_waitcnt vmcnt(24)')
        mf(q, 1, trr((q + 1) % 4, 0))
        e.i('s_sub_u32 s56, s56, 1')
        if nst % 4 or q == 3:
            e.i('s_cmp_eq_u32 s56, 0')
            e.settle()
            e.i(f's_cbranch_scc1 {done}')
    e.i(f's_branch {loop}')
    e.label(done)
    e.i('s_waitcnt vmcnt(0) lgkmcnt(0)')
    e._nop(16)
    e.i('v_lshlrev_b32 v2, 4, v1')
    e.i('v_add_u32 v3, s63, v2')
    for q in range(32):
        e.i(f'ds_write_b128 v3, a[{4*q}:{4*q+3}] offset:{q*1024}')
        if q % 8 == 7:
            e.i('s_waitcnt lgkmcnt(0)')
    e.i('s_barrier')
    e.i('s_lshl_b32 s60, s57, 13')
    e.i('v_add_u32 v3, s60, v2')
    e.i('v_add_u32 v4, 0x10000, v3')
    for w in range(4):
        for q in range(8):
            f = A0 + w * 32 + 4 * q
            e.i(f'ds_read_b128 v[{f}:{f+3}], v{3+(w>>1)} offset:{(w&1)*32768 + q*1024}')
        if w in (0, 2):
            e.i('s_waitcnt lgkmcnt(0)')
        if w == 1:
            for r in range(32):
                e.i(f'v_add_f32 v{A0+r}, v{A0+r}, v{A0+32+r}')
        if w == 3:
            for r in range(32):
                e.i(f'v_add_f32 v{A0+64+r}, v{A0+64+r}, v{A0+96+r}')
    for r in range(32):
        e.i(f'v_add_f32 v{A0+r}, v{A0+r}, v{A0+64+r}')
    make_srd(e, 48, *job['O'])
    e.i('v_and_b32 v2, 31, v1')
    e.i('s_lshl_b32 s60, s57, 5')
    e.i('s_add_u32 s60, s60, s52')
    e.i('v_add_u32 v2, s60, v2')
    e.i('v_mul_u32_u24 v2, 2560, v2')
    e.i('v_lshrrev_b32 v3, 5, v1')
    e.i('v_lshlrev_b32 v3, 3, v3')
    e.i('s_lshl_b32 s60, s53, 1')
    e.i(f's_add_u32 s60, s60, {job["obase"]}')
    e.i('v_add3_u32 v2, v2, v3, s60')
    for tn in range(2):
        for g in range(4):
            a = A0 + 16 * tn + 4 * g
            t = T + 2 * (tn * 4 + g)
            e.i(f'v_cvt_pk_bf16_f32 v{t}, v{a}, v{a+1}')
            e.i(f'v_cvt_pk_bf16_f32 v{t+1}, v{a+2}, v{a+3}')
            e.i(f'buffer_store_dwordx2 v[{t}:{t+1}], v2, s[48:51], 0 offen offset:{tn*64+16*g}')
    e.i('s_endpgm')

def outp_kernel(e, name):
    S = 2048
    jobs = [dict(X=(PTR['ws'], WS['CTX'], 16*MB), W=(PTR['B_wo'], 0, 4096*640*2), ldb=640, K=4096, O=(PTR['out'], 0, S*1280*2), obase=1280),
            dict(X=(PTR['ws'], WS['OA'], 40*65536), W=(PTR['A_wo'], 0, 640*640*2), ldb=640, K=640, O=(PTR['out'], 0, S*1280*2), obase=0)]
    e.raw(f'.globl {name}')
    e.raw('.p2align 8')
    e.raw(f'.type {name},@function')
    e.raw(f'{name}:')
    endl = e.newlabel('oend')
    l2 = e.newlabel('oj')
    e.i('s_cmp_ge_u32 s2, 320')
    e.i(f's_cbranch_scc1 {endl}')
    load_ptrs(e)
    e.i('s_cmp_ge_u32 s2, 160')
    e.i('s_cselect_b32 s3, 160, 0')
    e.i('s_sub_u32 s3, s2, s3')
    e.i('s_and_b32 s5, s3, 15')
    e.i('s_lshr_b32 s4, s3, 4')
    e.i('s_lshl_b32 s52, s5, 7')
    e.i('s_lshl_b32 s53, s4, 6')
    e.i('s_cmp_ge_u32 s2, 160')
    e.i(f's_cbranch_scc1 {l2}')
    out_job(e, jobs[0])
    e.label(l2)
    out_job(e, jobs[1])
    e.label(endl)
    e.i('s_endpgm')
    return 320
```
